```python
import torch

def _softmax(x, axis=-1):
    return torch.softmax(x, dim=axis)
def _gelu(x):
    return torch.nn.functional.gelu(x, approximate="tanh")
def _silu(x):
    return torch.nn.functional.silu(x)
def _sigmoid(x):
    return torch.sigmoid(x)
def _layernorm(x, axis=-1, eps=1e-5):
    m = x.mean(dim=axis, keepdim=True)
    v = x.var(dim=axis, keepdim=True, unbiased=False)
    return (x - m) / torch.sqrt(v + eps)
def _scatter_add(tgt, idx, src, axis=0):
    return tgt.clone().index_add_(axis, idx, src)
def _segment_sum(src, seg, n):
    out = torch.zeros((n,) + src.shape[1:], dtype=src.dtype)
    return out.index_add_(0, seg, src)
def _pad(x, pw):
    flat = tuple(v for pair in reversed(pw) for v in pair)
    return torch.nn.functional.pad(x, flat)

kernel_name = 'recurrent_scan__sliding_block_cached__glu_gated_bilinear__decode'

def setup_inputs():

    _w = (lambda a: (lambda t: t.to(torch.bfloat16) if t.is_floating_point() else t)(torch.as_tensor(a)))
    def _A_setup():
        B, Sq, D = 8, 1, 512
        Hq, Hkv, Sk, Dh = 32, 8, 4096, 128
        assert Hq % Hkv == 0, (Hq, Hkv)
        return {
            "x": _w((lambda *s: torch.randn(*s, dtype=torch.bfloat16) * 0.05)(B, Sq, D)),
            "k_cache": _w((lambda *s: torch.randn(*s, dtype=torch.bfloat16) * 3.2)(B, Hkv, Sk, Dh)),
            "v_cache": _w((lambda *s: torch.randn(*s, dtype=torch.bfloat16) * 3.2)(B, Hkv, Sk, Dh)),
            "wq": _w((lambda *s: torch.randn(*s, dtype=torch.bfloat16) * 3.2)(D, Hq * Dh) * (D ** -0.5)),
            "wo": _w((lambda *s: torch.randn(*s, dtype=torch.bfloat16) * 3.2)(Hq * Dh, D) * ((Hq * Dh) ** -0.5)),
        }
    _A_in = _A_setup()

    def _B_setup():
        B, S, D, F = 8, 1, 512, 1792
        return {
            "x": _w((lambda *s: torch.randn(*s, dtype=torch.bfloat16) * 0.05)(B, S, D)),
            "w_gate": _w((lambda *s: torch.randn(*s, dtype=torch.bfloat16) * 0.4)(D, F) * (D ** -0.5)),
            "w_up": _w((lambda *s: torch.randn(*s, dtype=torch.bfloat16) * 0.4)(D, F) * (D ** -0.5)),
            "w_down": _w((lambda *s: torch.randn(*s, dtype=torch.bfloat16) * 0.4)(F, D) * (F ** -0.5)),
        }
    _B_in = _B_setup()

    return {
        "A_x": _A_in["x"],
        "A_k_cache": _A_in["k_cache"],
        "A_v_cache": _A_in["v_cache"],
        "A_wq": _A_in["wq"],
        "A_wo": _A_in["wo"],
        "B_x": _B_in["x"],
        "B_w_gate": _B_in["w_gate"],
        "B_w_up": _B_in["w_up"],
        "B_w_down": _B_in["w_down"],
    }

def reference(A_x, A_k_cache, A_v_cache, A_wq, A_wo, B_x, B_w_gate, B_w_up, B_w_down):
    def _A_ref(x, k_cache, v_cache, wq, wo):
        B, Sq, D = x.shape
        Hq, Dh = 32, 128
        Hkv, Sk = k_cache.shape[1], k_cache.shape[2]
        W = min(4096, max(256, Sk // 4))
        rep = Hq // Hkv
        q = (lambda x, *d: x.permute(*d))((x @ wq).reshape(B, Sq, Hq, Dh), 0, 2, 1, 3)
        k = (lambda x, n, axis: torch.repeat_interleave(x, n, dim=axis))(k_cache[:, :, Sk - W:, :], rep, axis=1)
        v = (lambda x, n, axis: torch.repeat_interleave(x, n, dim=axis))(v_cache[:, :, Sk - W:, :], rep, axis=1)
        scores = torch.einsum("bhqd,bhkd->bhqk", q, k) * (Dh ** -0.5)
        p = _softmax(scores, axis=-1)
        o = torch.einsum("bhqk,bhkd->bhqd", p, v)
        return (lambda x, *d: x.permute(*d))(o, 0, 2, 1, 3).reshape(B, Sq, Hq * Dh) @ wo

    def _B_ref(x, w_gate, w_up, w_down):
        g = torch.einsum("bsd,df->bsf", x, w_gate)
        u = torch.einsum("bsd,df->bsf", x, w_up)
        h = g * u
        return torch.einsum("bsf,fd->bsd", h, w_down)

    x = A_x
    xn = _layernorm(x, axis=-1)
    s = _A_ref(xn, A_k_cache, A_v_cache, A_wq, A_wo)
    g = _silu(_B_ref(xn, B_w_gate, B_w_up, B_w_down))
    return x + s * g
```

```python
import sys

NAME = "recurrent_scan__sliding_block_cached__glu_gated_bilinear__decode"
HEADER = open("cdna_kernels/%s.s.ref" % NAME).read().split("; @launch")[0]

opt = dict(
    kwait=4,
    nt=0,
    spin=400000,
    sleep=0,
)
for a in sys.argv[2:]:
    k, v = a.split("=")
    opt[k] = int(v)

GEN = 0
QG = 4096
HG = QG + 8 * 16384
OG = 196608
MLG = OG + 32 * 8 * 4 * 1024
SG = 1310720
DG = SG + 8 * 32 * 4096
WS_BYTES = DG + 8 * 8 * 4096
assert HG + 8 * 7168 <= OG and MLG + 32 * 8 * 4 * 16 <= SG

L_WQ = 0
L_OW = 0
L_WG = 16384
L_WU = 24576
L_WO = 32768
L_WD = 49152
L_XN = 57344
XS = 1088
L_Q = L_XN + 8 * XS
L_HT = L_Q + 1024
HS = 528
L_OT = L_HT + 8 * HS
OS = 272
L_ML = L_OT + 8 * OS
L_FIN = L_ML + 256
LDS_BYTES = L_FIN + 320
LDS_BYTES = (LDS_BYTES + 63) // 64 * 64

out = []
def A(s): out.append("    " + s)
def L(s): out.append(s + ":")
def C(s): out.append("    ; " + s)

sX, sK, sV, sWQ, sWO, sWG, sWU, sWD, sOUT, sWS = [28 + 4 * i for i in range(10)]
def srd(r): return "s[%d:%d]" % (r, r + 3)
sW, sx, sy = 68, 69, 70
sSELLO, sSELHI, sSPIN = 80, 81, 82
sSCALE, sLOG2E = 83, 86
sEX = 84
sKVOFF, sT0, sT1, sT2, sT3 = 71, 72, 73, 74, 75
sJ, sNS, sB, sCc = 76, 77, 78, 79
sWOoff, sWDoff, sW6 = 87, 88, 89

vLANE, vI, vG, vTAG, vXF = 1, 2, 3, 4, 5
NT = " nt" if opt["nt"] else ""

def allsum(x, t):
    for m in ("quad_perm:[1,0,3,2]", "quad_perm:[2,3,0,1]", "row_half_mirror", "row_mirror"):
        A("s_nop 1")
        A("v_add_f32_dpp v%d, v%d, v%d %s row_mask:0xf bank_mask:0xf" % (x, x, x, m))
    crossrow(x, t, "v_add_f32")

def crossrow(x, t, op):
    A("v_mov_b32 v%d, v%d" % (t, x))
    A("s_nop 1")
    A("v_permlane16_swap_b32 v%d, v%d" % (x, t))
    A("%s v%d, v%d, v%d" % (op, x, x, t))
    A("v_mov_b32 v%d, v%d" % (t, x))
    A("s_nop 1")
    A("v_permlane32_swap_b32 v%d, v%d" % (x, t))
    A("%s v%d, v%d, v%d" % (op, x, x, t))

def unpack(src, lo, hi):
    A("v_lshlrev_b32 v%d, 16, v%d" % (lo, src))
    A("v_and_b32 v%d, 0xffff0000, v%d" % (hi, src))

def tagcheck(tags, ta, tb, retry):
    assert len(tags) >= 2
    A("v_min_u32 v%d, v%d, v%d" % (ta, tags[0], tags[1]))
    A("v_max_u32 v%d, v%d, v%d" % (tb, tags[0], tags[1]))
    rest = tags[2:]
    while rest:
        if len(rest) >= 2:
            A("v_min3_u32 v%d, v%d, v%d, v%d" % (ta, ta, rest[0], rest[1]))
            A("v_max3_u32 v%d, v%d, v%d, v%d" % (tb, tb, rest[0], rest[1]))
            rest = rest[2:]
        else:
            A("v_min_u32 v%d, v%d, v%d" % (ta, ta, rest[0]))
            A("v_max_u32 v%d, v%d, v%d" % (tb, tb, rest[0]))
            rest = rest[1:]
    A("v_xor_b32 v%d, v%d, v%d" % (ta, ta, vTAG))
    A("v_xor_b32 v%d, v%d, v%d" % (tb, tb, vTAG))
    A("v_or_b32 v%d, v%d, v%d" % (ta, ta, tb))
    A("v_cmp_ne_u32 vcc, 0, v%d" % ta)
    A("s_cbranch_vccz %s_ok" % retry)
    A("s_add_u32 s%d, s%d, 1" % (sSPIN, sSPIN))
    A("s_cmp_lt_u32 s%d, %d" % (sSPIN, opt["spin"]))
    if opt["sleep"]:
        A("s_sleep %d" % opt["sleep"])
    A("s_cbranch_scc1 %s" % retry)
    L(retry + "_ok")

def gemv_tile(nk, abase, astep, ahalf, bbase, acc, buf):
    batches = [list(range(s, min(s + 4, nk))) for s in range(0, nk, 4)]
    def issue(bi):
        for n, t in enumerate(batches[bi]):
            r = buf + (bi & 1) * 32 + n * 8
            A("ds_read_b64_tr_b16 v[%d:%d], v%d offset:%d" % (r, r + 1, abase, t * astep))
            A("ds_read_b64_tr_b16 v[%d:%d], v%d offset:%d" % (r + 2, r + 3, abase, t * astep + ahalf))
            A("ds_read_b128 v[%d:%d], v%d offset:%d" % (r + 4, r + 7, bbase, t * 64))
    issue(0)
    first = True
    for bi in range(len(batches)):
        A("s_waitcnt lgkmcnt(0)")
        if bi + 1 < len(batches):
            issue(bi + 1)
        for n, t in enumerate(batches[bi]):
            r = buf + (bi & 1) * 32 + n * 8
            c = "0" if first else "v[%d:%d]" % (acc, acc + 3)
            first = False
            A("v_mfma_f32_16x16x32_bf16 v[%d:%d], v[%d:%d], v[%d:%d], %s" % (acc, acc + 3, r, r + 3, r + 4, r + 7, c))
    A("s_nop 7")
    A("s_nop 1")

K = NAME + "_kernel"
out.append(HEADER.rstrip("\n"))
out.append("; @launch grid=(256,1,1) block=(512,1,1) lds=%d" % LDS_BYTES)
out.append('.amdgcn_target "amdgcn-amd-amdhsa--gfx950"')
out.append(".text")
out.append(".globl " + K)
out.append(".p2align 8")
out.append(".type %s,@function" % K)
L(K)
A("s_cmp_ge_u32 s2, 256")
A("s_cbranch_scc1 L_end")
A("s_load_dwordx16 s[4:19], s[0:1], 0")
A("s_load_dwordx8 s[20:27], s[0:1], 64")
A("v_lshrrev_b32 v6, 6, v0")
A("v_and_b32 v%d, 63, v0" % vLANE)
A("v_and_b32 v%d, 15, v0" % vI)
A("v_bfe_u32 v%d, v0, 4, 2" % vG)
A("v_readfirstlane_b32 s%d, v6" % sW)
A("s_and_b32 s%d, s2, 7" % sx)
A("s_lshr_b32 s%d, s2, 3" % sy)
A("s_mov_b32 s%d, 0x05040100" % sSELLO)
A("s_mov_b32 s%d, 0x07060302" % sSELHI)
A("s_mov_b32 s%d, 0" % sSPIN)
A("s_mov_b32 s%d, 0x3db504f3" % sSCALE)
A("s_mov_b32 s%d, 0x3fb8aa3b" % sLOG2E)
C("attention role: hkv=sx, b=sy>>2, c=sy&3")
A("s_lshr_b32 s%d, s%d, 2" % (sB, sy))
A("s_and_b32 s%d, s%d, 3" % (sCc, sy))
A("s_lshl_b32 s%d, s%d, 23" % (sKVOFF, sB))
A("s_lshl_b32 s%d, s%d, 20" % (sT0, sx))
A("s_add_u32 s%d, s%d, s%d" % (sKVOFF, sKVOFF, sT0))
A("s_lshl_b32 s%d, s%d, 16" % (sT0, sCc))
A("s_add_u32 s%d, s%d, s%d" % (sKVOFF, sKVOFF, sT0))
A("s_lshl_b32 s%d, s%d, 13" % (sT0, sW))
A("s_add_u32 s%d, s%d, s%d" % (sKVOFF, sKVOFF, sT0))
A("s_add_u32 s%d, s%d, %d" % (sKVOFF, sKVOFF, 3072 * 256))
C("o-proj role: j = sx*4 + (sy>>3), ns = sy&7")
A("s_lshl_b32 s%d, s%d, 2" % (sJ, sx))
A("s_lshr_b32 s%d, s%d, 3" % (sT0, sy))
A("s_add_u32 s%d, s%d, s%d" % (sJ, sJ, sT0))
A("s_and_b32 s%d, s%d, 7" % (sNS, sy))
C("wo soffset = (128j + 16 wave)*1024 + ns*128")
A("s_lshl_b32 s%d, s%d, 17" % (sWOoff, sJ))
A("s_lshl_b32 s%d, s%d, 14" % (sT0, sW))
A("s_add_u32 s%d, s%d, s%d" % (sWOoff, sWOoff, sT0))
A("s_lshl_b32 s%d, s%d, 7" % (sT0, sNS))
A("s_add_u32 s%d, s%d, s%d" % (sWOoff, sWOoff, sT0))
C("wd soffset = (224 kg + 32 min(wave,6))*1024 + ct*32 ; kg=sx ct=sy")
A("s_min_u32 s%d, s%d, 6" % (sW6, sW))
A("s_mul_i32 s%d, s%d, %d" % (sWDoff, sx, 224 * 1024))
A("s_lshl_b32 s%d, s%d, 15" % (sT0, sW6))
A("s_add_u32 s%d, s%d, s%d" % (sWDoff, sWDoff, sT0))
A("s_lshl_b32 s%d, s%d, 5" % (sT0, sy))
A("s_add_u32 s%d, s%d, s%d" % (sWDoff, sWDoff, sT0))
C("per-lane offsets")
A("v_lshlrev_b32 v6, 4, v%d" % vLANE)
A("v_lshrrev_b32 v7, 1, v%d" % vLANE)
A("v_and_b32 v8, 1, v%d" % vLANE)
A("v_lshlrev_b32 v8, 4, v8")
A("v_lshl_add_u32 v9, v7, 13, v8")
A("v_lshl_add_u32 v28, v7, 10, v8")
A("v_mul_u32_u24 v10, 3584, v%d" % vLANE)
A("v_lshrrev_b32 v7, 3, v%d" % vLANE)
A("v_and_b32 v8, 7, v%d" % vLANE)
A("v_lshlrev_b32 v8, 4, v8")
A("v_lshl_add_u32 v29, v7, 10, v8")
C("K voff = (8*(i>>2) + (i&3))*256 + g*16")
A("v_lshrrev_b32 v7, 2, v%d" % vI)
A("v_and_b32 v8, 3, v%d" % vI)
A("v_lshl_add_u32 v7, v7, 3, v8")
A("v_lshlrev_b32 v7, 8, v7")
A("v_lshl_add_u32 v11, v%d, 4, v7" % vG)
C("V voff = 8g*256 + i*16")
A("v_lshlrev_b32 v7, 11, v%d" % vG)
A("v_lshl_add_u32 v30, v%d, 4, v7" % vI)
A("v_mov_b32 v31, 0")
C("x for final: x[b_f=sx][16*sy + (l&15)]")
A("v_lshlrev_b32 v12, 1, v%d" % vI)
A("s_lshl_b32 s%d, s%d, 10" % (sT2, sx))
A("s_lshl_b32 s%d, s%d, 5" % (sT0, sy))
A("s_add_u32 s%d, s%d, s%d" % (sT2, sT2, sT0))
C("wq soffset = cb*32 + 2*wave*262144 ; cb = sx*32+sy")
A("s_lshl_b32 s%d, s%d, 5" % (sT0, sx))
A("s_add_u32 s%d, s%d, s%d" % (sT0, sT0, sy))
A("s_lshl_b32 s%d, s%d, 5" % (sT0, sT0))
A("s_lshl_b32 s%d, s%d, 19" % (sT1, sW))
A("s_add_u32 s%d, s%d, s%d" % (sT0, sT0, sT1))
C("wg soffset = wave*64*3584 + cbf*16 ; cbf = sx*28 + min(sy,27)")
A("s_min_u32 s%d, s%d, 27" % (sT3, sy))
A("s_mul_i32 s%d, s%d, 28" % (sT1, sx))
A("s_add_u32 s90, s%d, s%d" % (sT3, sT1))
A("s_lshl_b32 s%d, s90, 4" % sT3)
A("s_mul_i32 s%d, s%d, %d" % (sT1, sW, 64 * 3584))
A("s_add_u32 s%d, s%d, s%d" % (sT3, sT3, sT1))
A("s_lshl_b32 s91, s%d, 10" % sW)
A("s_waitcnt lgkmcnt(0)")
def mksrd(r, p, nbytes):
    A("s_mov_b32 s%d, s%d" % (r, p))
    A("s_and_b32 s%d, s%d, 0xffff" % (r + 1, p + 1))
    A("s_mov_b32 s%d, %d" % (r + 2, nbytes))
    A("s_mov_b32 s%d, 0x00020000" % (r + 3))
mksrd(sWS, 26, WS_BYTES)
mksrd(sX, 4, 8192)
mksrd(sWQ, 10, 512 * 4096 * 2)
C("first loads")
A("buffer_load_dword v%d, v31, %s, 0 offen sc1" % (vTAG, srd(sWS)))
A("buffer_load_ushort v%d, v12, %s, s%d offen" % (vXF, srd(sX), sT2))
A("buffer_load_dwordx4 v[20:23], v6, %s, s91 offen" % srd(sX))
A("s_lshl_b32 s92, s91, 1")
A("s_add_u32 s92, s92, %d" % L_WQ)
A("s_mov_b32 m0, s92")
A("s_add_u32 s93, s%d, 262144" % sT0)
A("buffer_load_dwordx4 v9, %s, s%d offen lds" % (srd(sWQ), sT0))
A("s_add_u32 s92, s92, 1024")
A("s_mov_b32 m0, s92")
mksrd(sWG, 16, 512 * 1792 * 2)
A("buffer_load_dwordx4 v9, %s, s93 offen lds" % srd(sWQ))
mksrd(sWU, 18, 512 * 1792 * 2)
A("s_add_u32 s92, s91, %d" % L_WG)
A("s_mov_b32 m0, s92")
mksrd(sK, 6, 64 << 20)
A("buffer_load_dwordx4 v10, %s, s%d offen lds" % (srd(sWG), sT3))
A("s_add_u32 s92, s91, %d" % L_WU)
A("s_mov_b32 m0, s92")
mksrd(sV, 8, 64 << 20)
A("buffer_load_dwordx4 v10, %s, s%d offen lds" % (srd(sWU), sT3))
for T in range(2):
    for t in range(4):
        r = 32 + (T * 4 + t) * 4
        A("buffer_load_dwordx4 v[%d:%d], v11, %s, s%d offen offset:%d%s" % (r, r + 3, srd(sK), sKVOFF, T * 1024 + t * 64, NT))
mksrd(sWO, 12, 4096 * 512 * 2)
mksrd(sWD, 20, 1792 * 512 * 2)
mksrd(sOUT, 22, 8192)

C("P1 layernorm")
A("s_waitcnt vmcnt(12)")
A("v_add_u32 v%d, 1, v%d" % (vTAG, vTAG))
for k in range(4):
    unpack(20 + k, 12 + 2 * k, 13 + 2 * k)
A("v_add_f32 v20, v12, v13")
A("v_add_f32 v21, v14, v15")
A("v_add_f32 v22, v16, v17")
A("v_add_f32 v23, v18, v19")
A("v_add_f32 v20, v20, v21")
A("v_add_f32 v22, v22, v23")
A("v_add_f32 v20, v20, v22")
allsum(20, 21)
A("v_mul_f32 v20, 0x3b000000, v20")
A("v_sub_f32 v21, v12, v20")
A("v_mul_f32 v22, v21, v21")
for k in range(1, 8):
    A("v_sub_f32 v21, v%d, v20" % (12 + k))
    A("v_fmac_f32 v22, v21, v21")
allsum(22, 21)
A("v_mul_f32 v22, 0x3b000000, v22")
A("v_cvt_pk_bf16_f32 v20, v20, v22")
A("v_and_b32 v22, 0xffff0000, v20")
A("v_lshlrev_b32 v20, 16, v20")
A("v_add_f32 v22, 0x3727c5ac, v22")
A("v_cvt_pk_bf16_f32 v22, v22, v22")
A("v_lshlrev_b32 v22, 16, v22")
A("v_sqrt_f32 v22, v22")
A("s_nop 0")
A("v_cvt_pk_bf16_f32 v22, v22, v22")
A("v_lshlrev_b32 v22, 16, v22")
A("v_rcp_f32 v23, v22")
for k in range(4):
    a, b = 12 + 2 * k, 13 + 2 * k
    A("v_sub_f32 v%d, v%d, v20" % (a, a))
    A("v_sub_f32 v%d, v%d, v20" % (b, b))
    A("v_cvt_pk_bf16_f32 v21, v%d, v%d" % (a, b))
    unpack(21, a, b)
    for e in (a, b):
        A("v_mul_f32 v21, v%d, v23" % e)
        A("v_fma_f32 v24, -v21, v22, v%d" % e)
        A("v_fma_f32 v%d, v24, v23, v21" % e)
    A("v_cvt_pk_bf16_f32 v%d, v%d, v%d" % (96 + k, a, b))
A("s_mul_i32 s92, s%d, %d" % (sW, XS))
A("s_add_u32 s92, s92, %d" % L_XN)
A("v_add_u32 v7, s92, v6")
A("ds_write_b128 v7, v[96:99]")
A("s_waitcnt vmcnt(8) lgkmcnt(0)")
A("s_barrier")

C("P2")
A("v_and_b32 v7, 7, v%d" % vI)
A("v_mul_u32_u24 v7, %d, v7" % XS)
A("v_lshl_add_u32 v7, v%d, 4, v7" % vG)
A("v_add_u32 v7, %d, v7" % L_XN)
A("s_cmp_eq_u32 s%d, 0" % sW)
A("s_cbranch_scc1 L_p2q")
A("s_cmp_eq_u32 s%d, 1" % sW)
A("s_cbranch_scc1 L_p2e")
A("s_branch L_p3")
L("L_p2q")
A("v_lshlrev_b32 v8, 8, v%d" % vG)
A("v_lshl_add_u32 v8, v%d, 3, v8" % vI)
if L_WQ:
    A("v_add_u32 v8, %d, v8" % L_WQ)
gemv_tile(16, 8, 1024, 128, 7, 12, 64)
A("v_cvt_pk_bf16_f32 v16, v12, v13")
A("v_cvt_pk_bf16_f32 v18, v14, v15")
A("v_mov_b32 v17, v%d" % vTAG)
A("v_mov_b32 v19, v%d" % vTAG)
C("addr = QG + b*16384 + cb*64 + g*16")
A("v_lshlrev_b32 v8, 14, v%d" % vI)
A("v_lshl_add_u32 v8, v%d, 4, v8" % vG)
A("s_lshl_b32 s92, s%d, 5" % sx)
A("s_add_u32 s92, s92, s%d" % sy)
A("s_lshl_b32 s92, s92, 6")
A("s_add_u32 s92, s92, %d" % QG)
A("v_cmp_gt_u32 vcc, 8, v%d" % vI)
A("s_and_saveexec_b64 s[%d:%d], vcc" % (sEX, sEX + 1))
A("buffer_store_dwordx4 v[16:19], v8, %s, s92 offen sc1" % srd(sWS))
A("s_mov_b64 exec, s[%d:%d]" % (sEX, sEX + 1))
A("s_branch L_p3")
L("L_p2e")
C("base = L_WG + g*128 + (i>>2)*16 + (i&1)*8 + ((i>>1)&1)*8192")
A("v_lshlrev_b32 v8, 7, v%d" % vG)
A("v_lshrrev_b32 v9, 2, v%d" % vI)
A("v_lshl_add_u32 v8, v9, 4, v8")
A("v_and_b32 v9, 1, v%d" % vI)
A("v_lshl_add_u32 v8, v9, 3, v8")
A("v_bfe_u32 v9, v%d, 1, 1" % vI)
A("v_lshl_add_u32 v8, v9, 13, v8")
A("v_add_u32 v8, %d, v8" % L_WG)
gemv_tile(16, 8, 512, 64, 7, 12, 64)
A("v_cvt_pk_bf16_f32 v16, v12, v13")
A("v_cvt_pk_bf16_f32 v17, v14, v15")
unpack(16, 12, 13)
unpack(17, 14, 15)
for r in range(4):
    A("v_mov_b32 v%d, v%d" % (16 + r, 12 + r))
A("s_nop 1")
for r in range(4):
    A("v_permlane32_swap_b32 v%d, v%d" % (12 + r, 16 + r))
for r in range(4):
    A("v_mul_f32 v%d, v%d, v%d" % (12 + r, 12 + r, 16 + r))
A("v_cvt_pk_bf16_f32 v16, v12, v13")
A("v_cvt_pk_bf16_f32 v18, v14, v15")
A("v_mov_b32 v17, v%d" % vTAG)
A("v_mov_b32 v19, v%d" % vTAG)
C("addr = HG + b*7168 + cbf*32 + g*16, lanes i<8, g<2, only if sy<28")
A("v_mul_u32_u24 v8, 7168, v%d" % vI)
A("v_lshl_add_u32 v8, v%d, 4, v8" % vG)
A("s_lshl_b32 s92, s90, 5")
A("s_add_u32 s92, s92, %d" % HG)
A("s_cmp_ge_u32 s%d, 28" % sy)
A("s_cbranch_scc1 L_p3")
A("v_cmp_gt_u32 vcc, 8, v%d" % vI)
A("v_cmp_gt_u32 s[94:95], 2, v%d" % vG)
A("s_and_b64 vcc, vcc, s[94:95]")
A("s_and_saveexec_b64 s[%d:%d], vcc" % (sEX, sEX + 1))
A("buffer_store_dwordx4 v[16:19], v8, %s, s92 offen sc1" % srd(sWS))
A("s_mov_b64 exec, s[%d:%d]" % (sEX, sEX + 1))

L("L_p3")
C("q poll addr = QG + b*16384 + hkv*2048 + wave*256 + i*16")
A("s_lshl_b32 s92, s%d, 14" % sB)
A("s_lshl_b32 s93, s%d, 11" % sx)
A("s_add_u32 s92, s92, s93")
A("s_lshl_b32 s93, s%d, 8" % sW)
A("s_add_u32 s92, s92, s93")
A("s_add_u32 s92, s92, %d" % QG)
A("v_lshlrev_b32 v8, 4, v%d" % vI)
A("s_waitcnt vmcnt(%d)" % opt["kwait"])
A("buffer_load_dwordx4 v[12:15], v8, %s, s92 offen sc1" % srd(sWS))
for e in range(8):
    r = 64 + e * 4
    A("buffer_load_dwordx4 v[%d:%d], v30, %s, s%d offen offset:%d%s" % (r, r + 3, srd(sV), sKVOFF, e * 256, NT))
A("s_lshl_b32 s93, s91, 1")
A("s_add_u32 s93, s93, %d" % L_WO)
A("s_mov_b32 m0, s93")
A("s_add_u32 s94, s%d, 8192" % sWOoff)
A("buffer_load_dwordx4 v29, %s, s%d offen lds" % (srd(sWO), sWOoff))
A("s_add_u32 s93, s93, 1024")
A("s_mov_b32 m0, s93")
A("s_lshl_b32 s95, s%d, 10" % sW6)
A("buffer_load_dwordx4 v29, %s, s94 offen lds" % srd(sWO))
A("s_add_u32 s95, s95, %d" % L_WD)
A("s_mov_b32 m0, s95")
A("s_nop 0")
A("buffer_load_dwordx4 v28, %s, s%d offen lds" % (srd(sWD), sWDoff))
A("s_waitcnt vmcnt(11)")
A("s_branch L_qchk")
L("L_qretry")
A("buffer_load_dwordx4 v[12:15], v8, %s, s92 offen sc1" % srd(sWS))
A("s_waitcnt vmcnt(0)")
L("L_qchk")
tagcheck([13, 15], 16, 17, "L_qretry")
A("v_mov_b32 v13, v14")
A("s_lshl_b32 s93, s%d, 7" % sW)
A("s_add_u32 s93, s93, %d" % L_Q)
A("v_lshlrev_b32 v9, 3, v%d" % vI)
A("v_add_u32 v9, s93, v9")
A("ds_write_b64 v9, v[12:13]")
A("s_waitcnt lgkmcnt(0)")
A("s_barrier")

C("P5")
A("v_and_b32 v9, 3, v%d" % vI)
A("v_lshlrev_b32 v9, 8, v9")
A("v_lshl_add_u32 v9, v%d, 4, v9" % vG)
A("v_add_u32 v9, %d, v9" % L_Q)
for t in range(4):
    A("ds_read_b128 v[%d:%d], v9 offset:%d" % (96 + 4 * t, 99 + 4 * t, t * 64))
A("s_waitcnt vmcnt(11) lgkmcnt(0)")
for T in range(2):
    for t in range(4):
        r = 32 + (T * 4 + t) * 4
        acc = 112 + 4 * T
        c = "0" if t == 0 else "v[%d:%d]" % (acc, acc + 3)
        A("v_mfma_f32_16x16x32_bf16 v[%d:%d], v[%d:%d], v[%d:%d], %s" % (acc, acc + 3, r, r + 3, 96 + 4 * t, 99 + 4 * t, c))
A("s_nop 7")
A("s_nop 1")
for k in range(4):
    A("v_cvt_pk_bf16_f32 v%d, v%d, v%d" % (20 + k, 112 + 2 * k, 113 + 2 * k))
for k in range(4):
    unpack(20 + k, 12 + 2 * k, 13 + 2 * k)
for k in range(8):
    A("v_mul_f32 v%d, s%d, v%d" % (12 + k, sSCALE, 12 + k))
for k in range(4):
    A("v_cvt_pk_bf16_f32 v%d, v%d, v%d" % (20 + k, 12 + 2 * k, 13 + 2 * k))
for k in range(4):
    unpack(20 + k, 12 + 2 * k, 13 + 2 * k)
A("v_max3_f32 v20, v12, v13, v14")
A("v_max3_f32 v20, v20, v15, v16")
A("v_max3_f32 v20, v20, v17, v18")
A("v_max_f32 v20, v20, v19")
crossrow(20, 21, "v_max_f32")
for k in range(8):
    A("v_sub_f32 v%d, v%d, v20" % (12 + k, 12 + k))
for k in range(8):
    A("v_mul_f32 v%d, s%d, v%d" % (12 + k, sLOG2E, 12 + k))
for k in range(8):
    A("v_exp_f32 v%d, v%d" % (12 + k, 12 + k))
A("s_nop 0")
A("v_add_f32 v22, v12, v13")
A("v_add_f32 v23, v14, v15")
A("v_add_f32 v22, v22, v16")
A("v_add_f32 v23, v23, v17")
A("v_add_f32 v22, v22, v18")
A("v_add_f32 v23, v23, v19")
A("v_add_f32 v22, v22, v23")
crossrow(22, 21, "v_add_f32")
for k in range(4):
    A("v_cvt_pk_bf16_f32 v%d, v%d, v%d" % (24 + k, 12 + 2 * k, 13 + 2 * k))

C("P6")
C("LDS addr for partial O: L_OW + wave*2048 + i*512 + g*128 (+j*16)")
A("s_lshl_b32 s92, s%d, 11" % sW)
A("s_add_u32 s92, s92, %d" % L_OW)
A("v_lshlrev_b32 v9, 9, v%d" % vI)
A("v_lshl_add_u32 v9, v%d, 7, v9" % vG)
A("v_add_u32 v9, s92, v9")
A("s_lshl_b32 s92, s%d, 2" % sW)
A("s_add_u32 s92, s92, %d" % L_ML)
A("v_lshlrev_b32 v10, 5, v%d" % vI)
A("v_add_u32 v10, s92, v10")
A("s_waitcnt vmcnt(3)")
for j in range(8):
    w = j >> 1
    sel = sSELHI if (j & 1) else sSELLO
    for u in range(4):
        A("v_perm_b32 v%d, v%d, v%d, s%d" % (32 + 4 * j + u, 64 + 4 * (2 * u + 1) + w, 64 + 4 * (2 * u) + w, sel))
A("s_nop 1")
for j in range(8):
    A("v_mfma_f32_16x16x32_bf16 v[%d:%d], v[%d:%d], v[24:27], 0" % (64 + 4 * j, 67 + 4 * j, 32 + 4 * j, 35 + 4 * j))
A("v_cmp_gt_u32 vcc, 4, v%d" % vI)
A("s_and_saveexec_b64 s[%d:%d], vcc" % (sEX, sEX + 1))
A("ds_write_b32 v10, v20")
A("ds_write_b32 v10, v22 offset:128")
A("s_nop 7")
for j in range(8):
    A("ds_write_b128 v9, v[%d:%d] offset:%d" % (64 + 4 * j, 67 + 4 * j, j * 16))
A("s_mov_b64 exec, s[%d:%d]" % (sEX, sEX + 1))
A("s_waitcnt lgkmcnt(0)")
A("s_barrier")

C("P7")
A("s_cmp_ge_u32 s%d, 4" % sW)
A("s_cbranch_scc1 L_p8")
C("addr = L_OW + h*512 + (l>>4)*128 + (l&3)*32 + ((l>>2)&3)*4")
A("s_lshl_b32 s92, s%d, 9" % sW)
A("s_add_u32 s92, s92, %d" % L_OW)
A("v_lshlrev_b32 v9, 7, v%d" % vG)
A("v_and_b32 v10, 3, v%d" % vLANE)
A("v_lshl_add_u32 v9, v10, 5, v9")
A("v_bfe_u32 v10, v%d, 2, 2" % vLANE)
A("v_lshl_add_u32 v9, v10, 2, v9")
A("v_add_u32 v9, s92, v9")
A("s_lshl_b32 s92, s%d, 5" % sW)
A("s_add_u32 s92, s92, %d" % L_ML)
A("v_mov_b32 v10, s92")
A("ds_read_b128 v[32:35], v10")
A("ds_read_b128 v[36:39], v10 offset:16")
A("ds_read_b128 v[40:43], v10 offset:128")
A("ds_read_b128 v[44:47], v10 offset:144")
for v in range(5):
    A("ds_read_b32 v%d, v9 offset:%d" % (48 + 2 * v, v * 2048))
    A("ds_read_b32 v%d, v9 offset:%d" % (49 + 2 * v, v * 2048 + 16))
A("s_waitcnt lgkmcnt(10)")
for v in range(5, 8):
    pass
A("v_max3_f32 v12, v32, v33, v34")
A("v_max3_f32 v12, v12, v35, v36")
A("v_max3_f32 v12, v12, v37, v38")
A("v_max_f32 v12, v12, v39")
for v in range(8):
    A("v_sub_f32 v%d, v%d, v12" % (32 + v, 32 + v))
for v in range(8):
    A("v_mul_f32 v%d, s%d, v%d" % (32 + v, sLOG2E, 32 + v))
for v in range(8):
    A("v_exp_f32 v%d, v%d" % (32 + v, 32 + v))
A("s_waitcnt lgkmcnt(4)")
for v in range(5, 8):
    A("ds_read_b32 v%d, v9 offset:%d" % (48 + 2 * v, v * 2048))
    A("ds_read_b32 v%d, v9 offset:%d" % (49 + 2 * v, v * 2048 + 16))
A("v_mul_f32 v14, v32, v40")
for v in range(1, 8):
    A("v_fmac_f32 v14, v%d, v%d" % (32 + v, 40 + v))
A("s_waitcnt lgkmcnt(0)")
A("v_mul_f32 v16, v32, v48")
A("v_mul_f32 v18, v32, v49")
for v in range(1, 8):
    A("v_fmac_f32 v16, v%d, v%d" % (32 + v, 48 + 2 * v))
    A("v_fmac_f32 v18, v%d, v%d" % (32 + v, 49 + 2 * v))
A("v_mov_b32 v13, v%d" % vTAG)
A("v_mov_b32 v15, v%d" % vTAG)
A("v_mov_b32 v17, v%d" % vTAG)
A("v_mov_b32 v19, v%d" % vTAG)
C("slot = ((hkv*4+wave)*8 + b)*4 + c")
A("s_lshl_b32 s92, s%d, 2" % sx)
A("s_add_u32 s92, s92, s%d" % sW)
A("s_lshl_b32 s92, s92, 3")
A("s_add_u32 s92, s92, s%d" % sB)
A("s_lshl_b32 s92, s92, 2")
A("s_add_u32 s92, s92, s%d" % sCc)
A("s_lshl_b32 s93, s92, 10")
A("s_add_u32 s93, s93, %d" % OG)
A("s_lshl_b32 s92, s92, 4")
A("s_add_u32 s92, s92, %d" % MLG)
A("buffer_store_dwordx4 v[16:19], v6, %s, s93 offen sc1" % srd(sWS))
A("s_mov_b64 exec, 1")
A("buffer_store_dwordx4 v[12:15], v31, %s, s92 offen sc1" % srd(sWS))
A("s_mov_b64 exec, -1")

L("L_p8")
C("slot base = (j*8 + wave)*4")
A("s_lshl_b32 s92, s%d, 3" % sJ)
A("s_add_u32 s92, s92, s%d" % sW)
A("s_lshl_b32 s93, s92, 12")
A("s_add_u32 s93, s93, %d" % OG)
A("s_lshl_b32 s92, s92, 6")
A("s_add_u32 s92, s92, %d" % MLG)
A("s_mul_i32 s94, s%d, 7168" % sW)
A("s_mul_i32 s95, s%d, 896" % sx)
A("s_add_u32 s94, s94, s95")
A("s_add_u32 s94, s94, %d" % HG)
A("v_min_u32 v9, 55, v%d" % vLANE)
A("v_lshlrev_b32 v10, 4, v9")
L("L_oretry")
for c in range(4):
    A("buffer_load_dwordx4 v[%d:%d], v6, %s, s93 offen offset:%d sc1" % (32 + 4 * c, 35 + 4 * c, srd(sWS), c * 1024))
for c in range(4):
    A("buffer_load_dwordx4 v[%d:%d], v31, %s, s92 offen offset:%d sc1" % (48 + 4 * c, 51 + 4 * c, srd(sWS), c * 16))
A("buffer_load_dwordx4 v[64:67], v10, %s, s94 offen sc1" % srd(sWS))
A("s_waitcnt vmcnt(0)")
tagcheck([33 + 2 * k for k in range(18)], 12, 13, "L_oretry")
A("v_max3_f32 v12, v48, v52, v56")
A("v_max_f32 v12, v12, v60")
for c in range(4):
    A("v_sub_f32 v%d, v%d, v12" % (48 + 4 * c, 48 + 4 * c))
for c in range(4):
    A("v_mul_f32 v%d, s%d, v%d" % (48 + 4 * c, sLOG2E, 48 + 4 * c))
for c in range(4):
    A("v_exp_f32 v%d, v%d" % (48 + 4 * c, 48 + 4 * c))
A("v_mov_b32 v65, v66")
A("v_mul_f32 v13, v48, v50")
A("v_mul_f32 v14, v48, v32")
A("v_mul_f32 v15, v48, v34")
for c in range(1, 4):
    A("v_fmac_f32 v13, v%d, v%d" % (48 + 4 * c, 50 + 4 * c))
    A("v_fmac_f32 v14, v%d, v%d" % (48 + 4 * c, 32 + 4 * c))
    A("v_fmac_f32 v15, v%d, v%d" % (48 + 4 * c, 34 + 4 * c))
A("v_rcp_f32 v16, v13")
A("s_mul_i32 s92, s%d, %d" % (sW, HS))
A("s_add_u32 s92, s92, %d" % L_HT)
A("v_lshlrev_b32 v9, 3, v9")
A("v_add_u32 v9, s92, v9")
A("ds_write_b64 v9, v[64:65]")
for e in (14, 15):
    A("v_mul_f32 v17, v%d, v16" % e)
    A("v_fma_f32 v18, -v17, v13, v%d" % e)
    A("v_fma_f32 v%d, v18, v16, v17" % e)
A("v_cvt_pk_bf16_f32 v14, v14, v15")
A("s_mul_i32 s92, s%d, %d" % (sW, OS))
A("s_add_u32 s92, s92, %d" % L_OT)
A("v_lshlrev_b32 v9, 2, v%d" % vLANE)
A("v_add_u32 v9, s92, v9")
A("ds_write_b32 v9, v14")
A("s_waitcnt lgkmcnt(0)")
A("s_barrier")

C("P9")
A("s_cmp_gt_u32 s%d, 4" % sW)
A("s_cbranch_scc1 L_fbar")
A("v_and_b32 v9, 7, v%d" % vI)
A("s_cmp_eq_u32 s%d, 4" % sW)
A("s_cbranch_scc1 L_p9e")
C("A base = L_WO + (8g + (i>>2))*128 + ct*32 + (i&3)*8")
A("v_lshrrev_b32 v8, 2, v%d" % vI)
A("v_lshl_add_u32 v8, v%d, 3, v8" % vG)
A("v_lshlrev_b32 v8, 7, v8")
A("v_and_b32 v10, 3, v%d" % vI)
A("v_lshl_add_u32 v8, v10, 3, v8")
A("s_lshl_b32 s92, s%d, 5" % sW)
A("s_add_u32 s92, s92, %d" % L_WO)
A("v_add_u32 v8, s92, v8")
A("v_mul_u32_u24 v7, %d, v9" % OS)
A("v_lshl_add_u32 v7, v%d, 4, v7" % vG)
A("v_add_u32 v7, %d, v7" % L_OT)
gemv_tile(4, 8, 4096, 512, 7, 12, 64)
C("addr: voff = i*131072 + g*32 ; soff = SG + j*4096 + (64ns+16ct)*8")
A("v_lshlrev_b32 v8, 17, v%d" % vI)
A("v_lshl_add_u32 v8, v%d, 5, v8" % vG)
A("s_lshl_b32 s92, s%d, 12" % sJ)
A("s_lshl_b32 s93, s%d, 9" % sNS)
A("s_add_u32 s92, s92, s93")
A("s_lshl_b32 s93, s%d, 7" % sW)
A("s_add_u32 s92, s92, s93")
A("s_add_u32 s92, s92, %d" % SG)
A("s_branch L_p9pub")
L("L_p9e")
A("v_lshlrev_b32 v8, 8, v%d" % vG)
A("v_lshl_add_u32 v8, v%d, 3, v8" % vI)
A("v_add_u32 v8, %d, v8" % L_WD)
A("v_mul_u32_u24 v7, %d, v9" % HS)
A("v_lshl_add_u32 v7, v%d, 4, v7" % vG)
A("v_add_u32 v7, %d, v7" % L_HT)
gemv_tile(7, 8, 1024, 128, 7, 12, 64)
C("addr: voff = i*32768 + g*32 ; soff = DG + kg*4096 + ct*128")
A("v_lshlrev_b32 v8, 15, v%d" % vI)
A("v_lshl_add_u32 v8, v%d, 5, v8" % vG)
A("s_lshl_b32 s92, s%d, 12" % sx)
A("s_lshl_b32 s93, s%d, 7" % sy)
A("s_add_u32 s92, s92, s93")
A("s_add_u32 s92, s92, %d" % DG)
L("L_p9pub")
A("v_mov_b32 v16, v12")
A("v_mov_b32 v17, v%d" % vTAG)
A("v_mov_b32 v18, v13")
A("v_mov_b32 v19, v%d" % vTAG)
A("v_mov_b32 v20, v14")
A("v_mov_b32 v21, v%d" % vTAG)
A("v_mov_b32 v22, v15")
A("v_mov_b32 v23, v%d" % vTAG)
A("v_cmp_gt_u32 vcc, 8, v%d" % vI)
A("s_and_saveexec_b64 s[%d:%d], vcc" % (sEX, sEX + 1))
A("buffer_store_dwordx4 v[16:19], v8, %s, s92 offen sc1" % srd(sWS))
A("buffer_store_dwordx4 v[20:23], v8, %s, s92 offen offset:16 sc1" % srd(sWS))
A("s_mov_b64 exec, s[%d:%d]" % (sEX, sEX + 1))

C("P10: voff = (l>>3)*4096 + (l&7)*16")
A("v_lshrrev_b32 v8, 3, v%d" % vLANE)
A("v_and_b32 v9, 7, v%d" % vLANE)
A("v_lshlrev_b32 v10, 4, v9")
A("v_lshl_add_u32 v8, v8, 12, v10")
A("s_lshl_b32 s93, s%d, 7" % sy)
A("s_cmp_eq_u32 s%d, 4" % sW)
A("s_cbranch_scc1 L_p10d")
A("s_lshl_b32 s92, s%d, 17" % sx)
A("s_lshl_b32 s94, s%d, 15" % sW)
A("s_add_u32 s92, s92, s94")
A("s_add_u32 s92, s92, %d" % SG)
A("s_branch L_p10j")
L("L_p10d")
A("s_lshl_b32 s92, s%d, 15" % sx)
A("s_add_u32 s92, s92, %d" % DG)
L("L_p10j")
A("s_add_u32 s92, s92, s93")
L("L_fretry")
A("buffer_load_dwordx4 v[12:15], v8, %s, s92 offen sc1" % srd(sWS))
A("s_waitcnt vmcnt(0)")
tagcheck([13, 15], 16, 17, "L_fretry")
A("s_nop 1")
A("v_add_f32_dpp v12, v12, v12 row_ror:8 row_mask:0xf bank_mask:0xf")
A("v_add_f32_dpp v14, v14, v14 row_ror:8 row_mask:0xf bank_mask:0xf")
crossrow(12, 16, "v_add_f32")
crossrow(14, 16, "v_add_f32")
A("v_mov_b32 v13, v14")
A("s_lshl_b32 s92, s%d, 6" % sW)
A("s_add_u32 s92, s92, %d" % L_FIN)
A("v_lshlrev_b32 v9, 3, v9")
A("v_add_u32 v9, s92, v9")
A("ds_write_b64 v9, v[12:13]")
A("s_waitcnt lgkmcnt(0)")
L("L_fbar")
A("s_barrier")
A("s_cmp_lg_u32 s%d, 0" % sW)
A("s_cbranch_scc1 L_end")
A("v_lshlrev_b32 v9, 2, v%d" % vI)
A("v_add_u32 v9, %d, v9" % L_FIN)
for k in range(5):
    A("ds_read_b32 v%d, v9 offset:%d" % (12 + k, k * 64))
A("s_waitcnt lgkmcnt(0)")
A("v_add_f32 v12, v12, v13")
A("v_add_f32 v14, v14, v15")
A("v_add_f32 v12, v12, v14")
A("v_cvt_pk_bf16_f32 v12, v12, v16")
unpack(12, 13, 14)
A("v_mul_f32 v15, s%d, v14" % sLOG2E)
A("v_exp_f32 v15, -v15")
A("s_nop 0")
A("v_add_f32 v15, 1.0, v15")
A("v_rcp_f32 v16, v15")
A("s_nop 0")
A("v_mul_f32 v17, v14, v16")
A("v_fma_f32 v18, -v17, v15, v14")
A("v_fma_f32 v17, v18, v16, v17")
A("v_cvt_pk_bf16_f32 v17, v17, v17")
A("v_lshlrev_b32 v17, 16, v17")
A("v_mul_f32 v17, v13, v17")
A("v_cvt_pk_bf16_f32 v17, v17, v17")
A("v_lshlrev_b32 v17, 16, v17")
A("v_lshlrev_b32 v18, 16, v%d" % vXF)
A("v_add_f32 v17, v18, v17")
A("v_cvt_pk_bf16_f32 v17, v17, v17")
A("v_lshlrev_b32 v9, 1, v%d" % vI)
A("s_mov_b64 exec, 0xffff")
A("buffer_store_short v17, v9, %s, s%d offen" % (srd(sOUT), sT2))
A("s_cmp_lg_u32 s2, 0")
A("s_cbranch_scc1 L_end")
A("s_mov_b64 exec, 1")
A("buffer_store_dword v%d, v31, %s, 0 offen sc1" % (vTAG, srd(sWS)))
L("L_end")
A("s_endpgm")
out.append('.section .rodata,"a"')
out.append(".p2align 6")
out.append(".amdhsa_kernel " + K)
out.append("  .amdhsa_next_free_vgpr 128")
out.append("  .amdhsa_next_free_sgpr 96")
out.append("  .amdhsa_accum_offset 128")
out.append("  .amdhsa_group_segment_fixed_size 0")
out.append("  .amdhsa_kernarg_size 96")
out.append("  .amdhsa_user_sgpr_count 2")
out.append("  .amdhsa_user_sgpr_kernarg_segment_ptr 1")
out.append("  .amdhsa_system_sgpr_workgroup_id_x 1")
out.append(".end_amdhsa_kernel")
open(sys.argv[1], "w").write("\n".join(out) + "\n")
print("LDS", LDS_BYTES, "WS", WS_BYTES)
```

```python
import sys

NAME = "recurrent_scan__sliding_block_cached__glu_gated_bilinear__decode"
HEADER = open("cdna_kernels/%s.s.ref" % NAME).read().split("; @launch")[0]

opt = dict(
    kwait=4,
    nt=0,
    spin=400000,
    sleep=0,
    stamps=0,
    ntw=0,
    exp=0,
    kearly=2,
    qpw=2,
    fpipe=3,
    fsleep=8,
    ldspad=0,
    rsh=4,
    bar0=1,
)
for a in sys.argv[2:]:
    k, v = a.split("=")
    opt[k] = int(v)

GEN = 0
QG = 4096
HG = QG + 8 * 16384
OG = 262144
MLG = OG + 32 * 8 * 4 * 1024
SG = 1376256
DG = SG + 8 * 32 * 4096
WS_BYTES = DG + 8 * 8 * 4096
assert HG + 16 * 7168 <= OG and MLG + 32 * 8 * 4 * 16 <= SG

L_WQ = 0
L_OW = 0
L_WG = 16384
L_WU = 24576
L_WO = 32768
L_WD = 49152
L_XN = 57344
XS = 1088
L_Q = L_XN + 8 * XS
L_HT = L_Q + 1024
HS = 528
L_OT = L_HT + 8 * HS
OS = 272
L_ML = L_OT + 8 * OS
L_FIN = L_ML + 256
L_FLAG = L_FIN + 320
L_QP = L_XN + 8 * XS + 1024 + 8 * HS + 8 * OS + 256 + 320 + 64
L_GP = L_HT
assert L_QP == L_FLAG + 64
LDS_BYTES = L_QP + 4096
LDS_BYTES = (LDS_BYTES + 63) // 64 * 64
if opt["ldspad"]:
    LDS_BYTES = opt["ldspad"]

out = []
def A(s): out.append("    " + s)
def L(s): out.append(s + ":")
def C(s): out.append("    ; " + s)

sX, sK, sV, sWQ, sWO, sWG, sWU, sWD, sOUT, sWS = [28 + 4 * i for i in range(10)]
def srd(r): return "s[%d:%d]" % (r, r + 3)
sW, sx, sy = 68, 69, 70
sSELLO, sSELHI, sSPIN = 80, 81, 82
sSCALE, sLOG2E = 83, 86
sEX = 84
sKVOFF, sT0, sT1, sT2, sT3 = 71, 72, 73, 74, 75
sJ, sNS, sB, sCc = 76, 77, 78, 79
sWOoff, sWDoff, sW6 = 87, 88, 89
sMAT = 87
sRL = 88

vLANE, vI, vG, vTAG, vXF = 1, 2, 3, 4, 5
NT = " nt" if opt["nt"] else ""
NTW = " nt" if opt["ntw"] else ""

nstamp = [0]
def STAMP():
    if not opt["stamps"]:
        return
    A("s_memrealtime s[96:97]")
    A("s_waitcnt lgkmcnt(0)")
    A("v_writelane_b32 v128, s96, %d" % nstamp[0])
    nstamp[0] += 1

nlab = [0]
def waitv(base):
    n = nlab[0]; nlab[0] += 1
    A("s_cmp_gt_u32 s%d, 4" % sRL)
    A("s_cbranch_scc1 L_wv%d_a" % n)
    A("s_cmp_eq_u32 s%d, 4" % sRL)
    A("s_cbranch_scc1 L_wv%d_b" % n)
    A("s_waitcnt vmcnt(%d)" % (base + 4))
    A("s_branch L_wv%d_c" % n)
    L("L_wv%d_b" % n)
    A("s_waitcnt vmcnt(%d)" % (base + 7))
    A("s_branch L_wv%d_c" % n)
    L("L_wv%d_a" % n)
    A("s_waitcnt vmcnt(%d)" % base)
    L("L_wv%d_c" % n)

def allsum(x, t):
    for m in ("quad_perm:[1,0,3,2]", "quad_perm:[2,3,0,1]", "row_half_mirror", "row_mirror"):
        A("s_nop 1")
        A("v_add_f32_dpp v%d, v%d, v%d %s row_mask:0xf bank_mask:0xf" % (x, x, x, m))
    crossrow(x, t, "v_add_f32")

def crossrow(x, t, op):
    A("v_mov_b32 v%d, v%d" % (t, x))
    A("s_nop 1")
    A("v_permlane16_swap_b32 v%d, v%d" % (x, t))
    A("%s v%d, v%d, v%d" % (op, x, x, t))
    A("v_mov_b32 v%d, v%d" % (t, x))
    A("s_nop 1")
    A("v_permlane32_swap_b32 v%d, v%d" % (x, t))
    A("%s v%d, v%d, v%d" % (op, x, x, t))

def unpack(src, lo, hi):
    A("v_lshlrev_b32 v%d, 16, v%d" % (lo, src))
    A("v_and_b32 v%d, 0xffff0000, v%d" % (hi, src))

def tagcheck(tags, ta, tb, retry):
    assert len(tags) >= 2
    A("v_min_u32 v%d, v%d, v%d" % (ta, tags[0], tags[1]))
    A("v_max_u32 v%d, v%d, v%d" % (tb, tags[0], tags[1]))
    rest = tags[2:]
    while rest:
        if len(rest) >= 2:
            A("v_min3_u32 v%d, v%d, v%d, v%d" % (ta, ta, rest[0], rest[1]))
            A("v_max3_u32 v%d, v%d, v%d, v%d" % (tb, tb, rest[0], rest[1]))
            rest = rest[2:]
        else:
            A("v_min_u32 v%d, v%d, v%d" % (ta, ta, rest[0]))
            A("v_max_u32 v%d, v%d, v%d" % (tb, tb, rest[0]))
            rest = rest[1:]
    A("v_xor_b32 v%d, v%d, v%d" % (ta, ta, vTAG))
    A("v_xor_b32 v%d, v%d, v%d" % (tb, tb, vTAG))
    A("v_or_b32 v%d, v%d, v%d" % (ta, ta, tb))
    A("v_cmp_ne_u32 vcc, 0, v%d" % ta)
    A("s_cbranch_vccz %s_ok" % retry)
    A("s_add_u32 s%d, s%d, 1" % (sSPIN, sSPIN))
    A("s_cmp_lt_u32 s%d, %d" % (sSPIN, opt["spin"]))
    if opt["sleep"]:
        A("s_sleep %d" % opt["sleep"])
    A("s_cbranch_scc1 %s" % retry)
    L(retry + "_ok")

def gemv_tile(ks, abase, astep, ahalf, bbase, acc, bank0, bank1):
    if isinstance(ks, int):
        ks = list(range(ks))
    batches = [ks[s:s + 4] for s in range(0, len(ks), 4)]
    def issue(bi):
        for n, t in enumerate(batches[bi]):
            r = (bank1 if bi & 1 else bank0) + n * 8
            A("ds_read_b64_tr_b16 v[%d:%d], v%d offset:%d" % (r, r + 1, abase, t * astep))
            A("ds_read_b64_tr_b16 v[%d:%d], v%d offset:%d" % (r + 2, r + 3, abase, t * astep + ahalf))
            A("ds_read_b128 v[%d:%d], v%d offset:%d" % (r + 4, r + 7, bbase, t * 64))
    issue(0)
    first = True
    for bi in range(len(batches)):
        A("s_waitcnt lgkmcnt(0)")
        if bi + 1 < len(batches):
            issue(bi + 1)
        for n, t in enumerate(batches[bi]):
            r = (bank1 if bi & 1 else bank0) + n * 8
            c = "0" if first else "v[%d:%d]" % (acc, acc + 3)
            first = False
            A("v_mfma_f32_16x16x32_bf16 v[%d:%d], v[%d:%d], v[%d:%d], %s" % (acc, acc + 3, r, r + 3, r + 4, r + 7, c))
    A("s_nop 7")
    A("s_nop 1")

K = NAME + "_kernel"
out.append(HEADER.rstrip("\n"))
out.append("; @launch grid=(256,1,1) block=(512,1,1) lds=%d" % LDS_BYTES)
out.append('.amdgcn_target "amdgcn-amd-amdhsa--gfx950"')
out.append(".text")
out.append(".globl " + K)
out.append(".p2align 8")
out.append(".type %s,@function" % K)
L(K)
A("s_cmp_ge_u32 s2, 256")
A("s_cbranch_scc1 L_end")
STAMP()
A("s_load_dwordx16 s[4:19], s[0:1], 0")
A("s_load_dwordx8 s[20:27], s[0:1], 64")
A("v_lshrrev_b32 v6, 6, v0")
A("v_and_b32 v%d, 63, v0" % vLANE)
A("v_and_b32 v%d, 15, v0" % vI)
A("v_bfe_u32 v%d, v0, 4, 2" % vG)
A("v_readfirstlane_b32 s%d, v6" % sW)
A("s_add_u32 s%d, s%d, %d" % (sRL, sW, opt["rsh"]))
A("s_and_b32 s%d, s%d, 7" % (sRL, sRL))
A("s_and_b32 s%d, s2, 7" % sx)
A("s_lshr_b32 s%d, s2, 3" % sy)
A("s_mov_b32 s%d, 0x05040100" % sSELLO)
A("s_mov_b32 s%d, 0x07060302" % sSELHI)
A("s_mov_b32 s%d, 0" % sSPIN)
A("s_mov_b32 s%d, 0x3db504f3" % sSCALE)
A("s_mov_b32 s%d, 0x3fb8aa3b" % sLOG2E)
C("attention role: hkv=sx, b=sy>>2, c=sy&3")
A("s_lshr_b32 s%d, s%d, 2" % (sB, sy))
A("s_and_b32 s%d, s%d, 3" % (sCc, sy))
A("s_lshl_b32 s%d, s%d, 23" % (sKVOFF, sB))
A("s_lshl_b32 s%d, s%d, 20" % (sT0, sx))
A("s_add_u32 s%d, s%d, s%d" % (sKVOFF, sKVOFF, sT0))
A("s_lshl_b32 s%d, s%d, 16" % (sT0, sCc))
A("s_add_u32 s%d, s%d, s%d" % (sKVOFF, sKVOFF, sT0))
A("s_lshl_b32 s%d, s%d, 13" % (sT0, sW))
A("s_add_u32 s%d, s%d, s%d" % (sKVOFF, sKVOFF, sT0))
A("s_add_u32 s%d, s%d, %d" % (sKVOFF, sKVOFF, 3072 * 256))
C("o-proj role: j = sx*4 + (sy>>3), ns = sy&7")
A("s_lshl_b32 s%d, s%d, 2" % (sJ, sx))
A("s_lshr_b32 s%d, s%d, 3" % (sT0, sy))
A("s_add_u32 s%d, s%d, s%d" % (sJ, sJ, sT0))
A("s_and_b32 s%d, s%d, 7" % (sNS, sy))
C("per-lane offsets")
A("v_lshlrev_b32 v6, 4, v%d" % vLANE)
A("v_lshrrev_b32 v7, 1, v%d" % vLANE)
A("v_and_b32 v8, 1, v%d" % vLANE)
A("v_lshlrev_b32 v8, 4, v8")
A("v_lshl_add_u32 v9, v7, 13, v8")
A("v_lshl_add_u32 v28, v7, 10, v8")
A("v_mul_u32_u24 v10, 3584, v7")
A("v_add_u32 v10, v10, v8")
A("v_lshrrev_b32 v7, 3, v%d" % vLANE)
A("v_and_b32 v8, 7, v%d" % vLANE)
A("v_lshlrev_b32 v8, 4, v8")
A("v_mov_b32 v29, %d" % L_FLAG)
C("K voff = (8*(i>>2) + (i&3))*256 + g*16")
A("v_lshrrev_b32 v7, 2, v%d" % vI)
A("v_and_b32 v8, 3, v%d" % vI)
A("v_lshl_add_u32 v7, v7, 3, v8")
A("v_lshlrev_b32 v7, 8, v7")
A("v_lshl_add_u32 v11, v%d, 4, v7" % vG)
C("V voff = 8g*256 + i*16")
A("v_lshlrev_b32 v7, 11, v%d" % vG)
A("v_lshl_add_u32 v30, v%d, 4, v7" % vI)
A("v_mov_b32 v31, 0")
C("x for final: x[b_f=sx][16*sy + (l&15)]")
A("v_lshlrev_b32 v12, 1, v%d" % vI)
A("s_lshl_b32 s%d, s%d, 10" % (sT2, sx))
A("s_lshl_b32 s%d, s%d, 5" % (sT0, sy))
A("s_add_u32 s%d, s%d, s%d" % (sT2, sT2, sT0))
C("wq soffset = cb*32 + 2*wave*262144 ; cb = sx*32+sy")
A("s_lshl_b32 s%d, s%d, 5" % (sT0, sx))
A("s_add_u32 s%d, s%d, s%d" % (sT0, sT0, sy))
A("s_lshl_b32 s%d, s%d, 5" % (sT0, sT0))
A("s_lshl_b32 s%d, s%d, 19" % (sT1, sW))
A("s_add_u32 s%d, s%d, s%d" % (sT0, sT0, sT1))
C("gu tile: syc=min(sy,27); mat = syc>=14; ti = syc-14*mat; soff = 448*sx + 32*ti + 2*wave*32*3584")
A("s_min_u32 s%d, s%d, 27" % (sT3, sy))
A("s_cmp_ge_u32 s%d, 14" % sT3)
A("s_cselect_b32 s%d, 1, 0" % sMAT)
A("s_mul_i32 s%d, s%d, 14" % (sT1, sMAT))
A("s_sub_u32 s90, s%d, s%d" % (sT3, sT1))
A("s_lshl_b32 s%d, s90, 5" % sT3)
A("s_mul_i32 s%d, s%d, 448" % (sT1, sx))
A("s_add_u32 s%d, s%d, s%d" % (sT3, sT3, sT1))
A("s_mul_i32 s%d, s%d, %d" % (sT1, sW, 64 * 3584))
A("s_add_u32 s%d, s%d, s%d" % (sT3, sT3, sT1))
A("s_lshl_b32 s91, s%d, 10" % sW)
A("s_waitcnt lgkmcnt(0)")
def mksrd(r, p, nbytes):
    A("s_mov_b32 s%d, s%d" % (r, p))
    A("s_and_b32 s%d, s%d, 0xffff" % (r + 1, p + 1))
    A("s_mov_b32 s%d, %d" % (r + 2, nbytes))
    A("s_mov_b32 s%d, 0x00020000" % (r + 3))
mksrd(sWS, 26, (8 << 20) if opt["stamps"] else WS_BYTES)
mksrd(sX, 4, 8192)
mksrd(sWQ, 10, 512 * 4096 * 2)
STAMP()
C("first loads")
A("s_load_dword s95, s[26:27], 0")
A("buffer_load_ushort v%d, v12, %s, s%d offen" % (vXF, srd(sX), sT2))
A("buffer_load_dwordx4 v[20:23], v6, %s, s91 offen" % srd(sX))
A("s_lshl_b32 s92, s91, 1")
A("s_add_u32 s92, s92, %d" % L_WQ)
A("s_mov_b32 m0, s92")
A("s_add_u32 s93, s%d, 262144" % sT0)
A("buffer_load_dwordx4 v9, %s, s%d offen%s lds" % (srd(sWQ), sT0, NTW))
A("s_add_u32 s92, s92, 1024")
A("s_mov_b32 m0, s92")
mksrd(sK, 6, 64 << 20)
A("buffer_load_dwordx4 v9, %s, s93 offen%s lds" % (srd(sWQ), NTW))
A("s_cmp_eq_u32 s%d, 0" % sMAT)
A("s_cselect_b32 s16, s16, s18")
A("s_cselect_b32 s17, s17, s19")
mksrd(sWG, 16, 512 * 1792 * 2)
A("s_lshl_b32 s92, s91, 1")
A("s_add_u32 s92, s92, %d" % L_WG)
A("s_mov_b32 m0, s92")
A("s_add_u32 s93, s%d, %d" % (sT3, 32 * 3584))
A("buffer_load_dwordx4 v10, %s, s%d offen%s lds" % (srd(sWG), sT3, NTW))
A("s_add_u32 s92, s92, 1024")
A("s_mov_b32 m0, s92")
A("s_nop 0")
A("buffer_load_dwordx4 v10, %s, s93 offen%s lds" % (srd(sWG), NTW))
if opt["bar0"]:
    A("s_barrier")
KE = opt["kearly"]
def kloads(lo, hi):
    for n in range(lo, hi):
        T, t = n >> 2, n & 3
        r = 32 + n * 4
        A("buffer_load_dwordx4 v[%d:%d], v11, %s, s%d offen offset:%d%s" % (r, r + 3, srd(sK), sKVOFF, T * 1024 + t * 64, NT))
kloads(0, KE)
mksrd(sV, 8, 64 << 20)
mksrd(sWO, 12, 4096 * 512 * 2)
mksrd(sWD, 20, 1792 * 512 * 2)
mksrd(sOUT, 22, 8192)

C("P1 layernorm")
A("s_waitcnt vmcnt(%d)" % (4 + KE))
STAMP()
A("s_waitcnt lgkmcnt(0)")
A("s_add_u32 s95, s95, 1")
A("v_mov_b32 v%d, s95" % vTAG)
for k in range(4):
    unpack(20 + k, 12 + 2 * k, 13 + 2 * k)
A("v_add_f32 v20, v12, v13")
A("v_add_f32 v21, v14, v15")
A("v_add_f32 v22, v16, v17")
A("v_add_f32 v23, v18, v19")
A("v_add_f32 v20, v20, v21")
A("v_add_f32 v22, v22, v23")
A("v_add_f32 v20, v20, v22")
allsum(20, 21)
A("v_mul_f32 v20, 0x3b000000, v20")
A("v_sub_f32 v21, v12, v20")
A("v_mul_f32 v22, v21, v21")
for k in range(1, 8):
    A("v_sub_f32 v21, v%d, v20" % (12 + k))
    A("v_fmac_f32 v22, v21, v21")
allsum(22, 21)
A("v_mul_f32 v22, 0x3b000000, v22")
A("v_cvt_pk_bf16_f32 v20, v20, v22")
A("v_and_b32 v22, 0xffff0000, v20")
A("v_lshlrev_b32 v20, 16, v20")
A("v_add_f32 v22, 0x3727c5ac, v22")
A("v_cvt_pk_bf16_f32 v22, v22, v22")
A("v_lshlrev_b32 v22, 16, v22")
A("v_sqrt_f32 v22, v22")
A("s_nop 0")
A("v_cvt_pk_bf16_f32 v22, v22, v22")
A("v_lshlrev_b32 v22, 16, v22")
A("v_rcp_f32 v23, v22")
for k in range(4):
    a, b = 12 + 2 * k, 13 + 2 * k
    A("v_sub_f32 v%d, v%d, v20" % (a, a))
    A("v_sub_f32 v%d, v%d, v20" % (b, b))
    A("v_cvt_pk_bf16_f32 v21, v%d, v%d" % (a, b))
    unpack(21, a, b)
    for e in (a, b):
        A("v_mul_f32 v21, v%d, v23" % e)
        A("v_fma_f32 v24, -v21, v22, v%d" % e)
        A("v_fma_f32 v%d, v24, v23, v21" % e)
    A("v_cvt_pk_bf16_f32 v%d, v%d, v%d" % (96 + k, a, b))
A("s_mul_i32 s92, s%d, %d" % (sW, XS))
A("s_add_u32 s92, s92, %d" % L_XN)
A("v_add_u32 v7, s92, v6")
A("ds_write_b128 v7, v[96:99]")
A("ds_write_b32 v29, v31")
A("s_waitcnt vmcnt(%d) lgkmcnt(0)" % KE)
STAMP()
A("s_barrier")
STAMP()

C("P2")
A("v_and_b32 v7, 7, v%d" % vI)
A("v_mul_u32_u24 v7, %d, v7" % XS)
A("v_lshl_add_u32 v7, v%d, 4, v7" % vG)
A("v_add_u32 v7, %d, v7" % L_XN)
A("s_lshl_b32 s92, s%d, 7" % sW)
A("v_add_u32 v16, s92, v7")
A("v_lshlrev_b32 v8, 8, v%d" % vG)
A("v_lshl_add_u32 v8, v%d, 3, v8" % vI)
A("s_lshl_b32 s92, s%d, 11" % sW)
A("s_add_u32 s92, s92, %d" % L_WQ)
A("v_add_u32 v8, s92, v8")
A("v_add_u32 v9, %d, v8" % (L_WG - L_WQ))
for n in range(2):
    A("ds_read_b64_tr_b16 v[%d:%d], v8 offset:%d" % (64 + 4 * n, 65 + 4 * n, n * 1024))
    A("ds_read_b64_tr_b16 v[%d:%d], v8 offset:%d" % (66 + 4 * n, 67 + 4 * n, n * 1024 + 128))
    A("ds_read_b128 v[%d:%d], v16 offset:%d" % (80 + 4 * n, 83 + 4 * n, n * 64))
for n in range(2):
    A("ds_read_b64_tr_b16 v[%d:%d], v9 offset:%d" % (72 + 4 * n, 73 + 4 * n, n * 1024))
    A("ds_read_b64_tr_b16 v[%d:%d], v9 offset:%d" % (74 + 4 * n, 75 + 4 * n, n * 1024 + 128))
A("s_waitcnt lgkmcnt(4)")
A("v_mfma_f32_16x16x32_bf16 v[12:15], v[64:67], v[80:83], 0")
A("v_mfma_f32_16x16x32_bf16 v[12:15], v[68:71], v[84:87], v[12:15]")
A("s_waitcnt lgkmcnt(0)")
A("v_mfma_f32_16x16x32_bf16 v[16:19], v[72:75], v[80:83], 0")
A("v_mfma_f32_16x16x32_bf16 v[16:19], v[76:79], v[84:87], v[16:19]")
C("partials -> L_QP/L_GP + wave*512 + (g*8 + i)*16 for i<8")
A("v_lshl_add_u32 v8, v%d, 3, v%d" % (vG, vI))
A("v_lshlrev_b32 v8, 4, v8")
A("v_add_u32 v8, %d, v8" % L_QP)
A("s_lshl_b32 s92, s%d, 9" % sW)
A("v_add_u32 v9, s92, v8")
A("v_cmp_gt_u32 vcc, 8, v%d" % vI)
A("s_and_saveexec_b64 s[%d:%d], vcc" % (sEX, sEX + 1))
A("s_nop 7")
A("ds_write_b128 v9, v[12:15]")
A("v_subrev_u32 v9, %d, v9" % (L_QP - L_GP))
A("ds_write_b128 v9, v[16:19]")
A("s_mov_b64 exec, s[%d:%d]" % (sEX, sEX + 1))
A("s_waitcnt lgkmcnt(0)")
A("s_barrier")
A("s_cmp_gt_u32 s%d, 1" % sW)
A("s_cbranch_scc1 L_p3")
C("wave 0 reduces q, wave 1 reduces gate/up")
A("s_mul_i32 s92, s%d, %d" % (sW, L_QP - L_GP))
A("v_subrev_u32 v8, s92, v8")
A("v_cmp_gt_u32 vcc, 8, v%d" % vI)
A("s_and_saveexec_b64 s[%d:%d], vcc" % (sEX, sEX + 1))
for v in range(8):
    A("ds_read_b128 v[%d:%d], v8 offset:%d" % (64 + 4 * v, 67 + 4 * v, v * 512))
A("s_cmp_eq_u32 s%d, 1" % sW)
A("s_cbranch_scc1 L_p2g")
C("q: addr = QG + b*16384 + cb*64 + g*16")
A("v_lshlrev_b32 v8, 14, v%d" % vI)
A("s_lshl_b32 s92, s%d, 5" % sx)
A("s_add_u32 s92, s92, s%d" % sy)
A("s_lshl_b32 s92, s92, 6")
A("s_add_u32 s92, s92, %d" % QG)
A("s_branch L_p2j")
L("L_p2g")
C("gu: addr = HG + (mat*8 + b)*7168 + sx*896 + ti*64 + g*16 ; skip if sy>=28")
A("v_mul_u32_u24 v8, 7168, v%d" % vI)
A("s_mul_i32 s92, s%d, %d" % (sMAT, 8 * 7168))
A("s_mul_i32 s93, s%d, 896" % sx)
A("s_add_u32 s92, s92, s93")
A("s_lshl_b32 s93, s90, 6")
A("s_add_u32 s92, s92, s93")
A("s_add_u32 s92, s92, %d" % HG)
A("s_cmp_lt_u32 s%d, 28" % sy)
A("s_cbranch_scc1 L_p2j")
A("s_waitcnt lgkmcnt(0)")
A("s_mov_b64 exec, s[%d:%d]" % (sEX, sEX + 1))
A("s_branch L_p3")
L("L_p2j")
A("v_lshl_add_u32 v8, v%d, 4, v8" % vG)
A("s_waitcnt lgkmcnt(0)")
for v in range(1, 8):
    for r in range(4):
        A("v_add_f32 v%d, v%d, v%d" % (64 + r, 64 + r, 64 + 4 * v + r))
A("v_cvt_pk_bf16_f32 v16, v64, v65")
A("v_cvt_pk_bf16_f32 v18, v66, v67")
A("v_mov_b32 v17, v%d" % vTAG)
A("v_mov_b32 v19, v%d" % vTAG)
A("buffer_store_dwordx4 v[16:19], v8, %s, s92 offen sc1" % srd(sWS))
A("s_mov_b64 exec, s[%d:%d]" % (sEX, sEX + 1))

L("L_p3")
STAMP()
kloads(KE, 8)
for e in range(8):
    r = 64 + e * 4
    A("buffer_load_dwordx4 v[%d:%d], v30, %s, s%d offen offset:%d%s" % (r, r + 3, srd(sV), sKVOFF, e * 256, NT))
A("s_cmp_gt_u32 s%d, 4" % sRL)
A("s_cbranch_scc1 L_p3x")
A("s_cmp_eq_u32 s%d, 4" % sRL)
A("s_cbranch_scc1 L_p3d")
C("wo column tile: soff = (128j + 32q)*1024 + ns*128 + wave*32 ; LDS L_WO + wave*4096 + q*1024")
A("s_lshl_b32 s92, s%d, 17" % sJ)
A("s_lshl_b32 s93, s%d, 7" % sNS)
A("s_add_u32 s92, s92, s93")
A("s_lshl_b32 s93, s%d, 5" % sRL)
A("s_add_u32 s92, s92, s93")
A("s_lshl_b32 s93, s%d, 12" % sRL)
A("s_add_u32 s93, s93, %d" % L_WO)
for q in range(4):
    A("s_mov_b32 m0, s93")
    A("s_add_u32 s93, s93, 1024")
    A("buffer_load_dwordx4 v28, %s, s92 offen%s lds" % (srd(sWO), NTW))
    A("s_add_u32 s92, s92, 32768")
A("s_branch L_p3x")
L("L_p3d")
C("wd tile: soff = (224kg + 32q)*1024 + ct*32")
A("s_mul_i32 s92, s%d, %d" % (sx, 224 * 1024))
A("s_lshl_b32 s93, s%d, 5" % sy)
A("s_add_u32 s92, s92, s93")
A("s_mov_b32 s93, %d" % L_WD)
for q in range(7):
    A("s_mov_b32 m0, s93")
    A("s_add_u32 s93, s93, 1024")
    A("buffer_load_dwordx4 v28, %s, s92 offen%s lds" % (srd(sWD), NTW))
    A("s_add_u32 s92, s92, 32768")
L("L_p3x")
STAMP()
A("s_cmp_lg_u32 s%d, %d" % (sW, opt["qpw"]))
A("s_cbranch_scc1 L_qf")
C("q poll addr = QG + b*16384 + hkv*2048 + l*32")
A("s_lshl_b32 s92, s%d, 14" % sB)
A("s_lshl_b32 s93, s%d, 11" % sx)
A("s_add_u32 s92, s92, s93")
A("s_add_u32 s92, s92, %d" % QG)
A("v_lshlrev_b32 v8, 5, v%d" % vLANE)
L("L_qretry")
A("buffer_load_dwordx4 v[12:15], v8, %s, s92 offen sc1" % srd(sWS))
A("buffer_load_dwordx4 v[16:19], v8, %s, s92 offen offset:16 sc1" % srd(sWS))
A("s_waitcnt vmcnt(0)")
tagcheck([13, 15, 17, 19], 20, 21, "L_qretry")
A("v_mov_b32 v20, v12")
A("v_mov_b32 v21, v14")
A("v_mov_b32 v22, v16")
A("v_mov_b32 v23, v18")
A("v_mov_b32 v9, 1")
A("v_add_u32 v8, %d, v6" % L_Q)
A("ds_write_b128 v8, v[20:23]")
A("s_waitcnt lgkmcnt(0)")
A("ds_write_b32 v29, v9")
C("wait for q flag in LDS")
L("L_qf")
A("ds_read_b32 v12, v29")
A("s_waitcnt lgkmcnt(0)")
A("v_readfirstlane_b32 s92, v12")
A("s_add_u32 s%d, s%d, 1" % (sSPIN, sSPIN))
A("s_cmp_eq_u32 s92, 1")
A("s_cbranch_scc1 L_qf_ok")
A("s_cmp_lt_u32 s%d, %d" % (sSPIN, opt["spin"] * 8))
A("s_cbranch_scc1 L_qf")
L("L_qf_ok")
STAMP()

C("P5")
A("v_and_b32 v9, 3, v%d" % vI)
A("v_lshlrev_b32 v9, 8, v9")
A("v_lshl_add_u32 v9, v%d, 4, v9" % vG)
A("v_add_u32 v9, %d, v9" % L_Q)
for t in range(4):
    A("ds_read_b128 v[%d:%d], v9 offset:%d" % (96 + 4 * t, 99 + 4 * t, t * 64))
waitv(8)
A("s_waitcnt lgkmcnt(0)")
for T in range(2):
    for t in range(4):
        r = 32 + (T * 4 + t) * 4
        acc = 112 + 4 * T
        c = "0" if t == 0 else "v[%d:%d]" % (acc, acc + 3)
        A("v_mfma_f32_16x16x32_bf16 v[%d:%d], v[%d:%d], v[%d:%d], %s" % (acc, acc + 3, r, r + 3, 96 + 4 * t, 99 + 4 * t, c))
A("s_nop 7")
A("s_nop 1")
for k in range(4):
    A("v_cvt_pk_bf16_f32 v%d, v%d, v%d" % (20 + k, 112 + 2 * k, 113 + 2 * k))
for k in range(4):
    unpack(20 + k, 12 + 2 * k, 13 + 2 * k)
for k in range(8):
    A("v_mul_f32 v%d, s%d, v%d" % (12 + k, sSCALE, 12 + k))
for k in range(4):
    A("v_cvt_pk_bf16_f32 v%d, v%d, v%d" % (20 + k, 12 + 2 * k, 13 + 2 * k))
for k in range(4):
    unpack(20 + k, 12 + 2 * k, 13 + 2 * k)
A("v_max3_f32 v20, v12, v13, v14")
A("v_max3_f32 v20, v20, v15, v16")
A("v_max3_f32 v20, v20, v17, v18")
A("v_max_f32 v20, v20, v19")
crossrow(20, 21, "v_max_f32")
for k in range(8):
    A("v_sub_f32 v%d, v%d, v20" % (12 + k, 12 + k))
for k in range(8):
    A("v_mul_f32 v%d, s%d, v%d" % (12 + k, sLOG2E, 12 + k))
for k in range(8):
    A("v_exp_f32 v%d, v%d" % (12 + k, 12 + k))
A("s_nop 0")
A("v_add_f32 v22, v12, v13")
A("v_add_f32 v23, v14, v15")
A("v_add_f32 v22, v22, v16")
A("v_add_f32 v23, v23, v17")
A("v_add_f32 v22, v22, v18")
A("v_add_f32 v23, v23, v19")
A("v_add_f32 v22, v22, v23")
crossrow(22, 21, "v_add_f32")
for k in range(4):
    A("v_cvt_pk_bf16_f32 v%d, v%d, v%d" % (24 + k, 12 + 2 * k, 13 + 2 * k))

C("P6")
C("LDS addr for partial O: L_OW + wave*2048 + i*512 + g*128 (+j*16)")
A("s_lshl_b32 s92, s%d, 11" % sW)
A("s_add_u32 s92, s92, %d" % L_OW)
A("v_lshlrev_b32 v9, 9, v%d" % vI)
A("v_lshl_add_u32 v9, v%d, 7, v9" % vG)
A("v_add_u32 v9, s92, v9")
A("s_lshl_b32 s92, s%d, 2" % sW)
A("s_add_u32 s92, s92, %d" % L_ML)
A("v_lshlrev_b32 v10, 5, v%d" % vI)
A("v_add_u32 v10, s92, v10")
STAMP()
waitv(0)
STAMP()
for j in range(8):
    w = j >> 1
    sel = sSELHI if (j & 1) else sSELLO
    for u in range(4):
        A("v_perm_b32 v%d, v%d, v%d, s%d" % (32 + 4 * j + u, 64 + 4 * (2 * u + 1) + w, 64 + 4 * (2 * u) + w, sel))
A("s_nop 1")
for j in range(8):
    A("v_mfma_f32_16x16x32_bf16 v[%d:%d], v[%d:%d], v[24:27], 0" % (64 + 4 * j, 67 + 4 * j, 32 + 4 * j, 35 + 4 * j))
A("v_cmp_gt_u32 vcc, 4, v%d" % vI)
A("s_and_saveexec_b64 s[%d:%d], vcc" % (sEX, sEX + 1))
A("ds_write_b32 v10, v20")
A("ds_write_b32 v10, v22 offset:128")
A("s_nop 7")
for j in range(8):
    A("ds_write_b128 v9, v[%d:%d] offset:%d" % (64 + 4 * j, 67 + 4 * j, j * 16))
A("s_mov_b64 exec, s[%d:%d]" % (sEX, sEX + 1))
A("s_waitcnt lgkmcnt(0)")
A("s_barrier")

C("P7")
A("s_cmp_ge_u32 s%d, 4" % sW)
A("s_cbranch_scc1 L_p8")
C("addr = L_OW + h*512 + (l>>4)*128 + (l&3)*32 + ((l>>2)&3)*4")
A("s_lshl_b32 s92, s%d, 9" % sW)
A("s_add_u32 s92, s92, %d" % L_OW)
A("v_lshlrev_b32 v9, 7, v%d" % vG)
A("v_and_b32 v10, 3, v%d" % vLANE)
A("v_lshl_add_u32 v9, v10, 5, v9")
A("v_bfe_u32 v10, v%d, 2, 2" % vLANE)
A("v_lshl_add_u32 v9, v10, 2, v9")
A("v_add_u32 v9, s92, v9")
A("s_lshl_b32 s92, s%d, 5" % sW)
A("s_add_u32 s92, s92, %d" % L_ML)
A("v_mov_b32 v10, s92")
A("ds_read_b128 v[32:35], v10")
A("ds_read_b128 v[36:39], v10 offset:16")
A("ds_read_b128 v[40:43], v10 offset:128")
A("ds_read_b128 v[44:47], v10 offset:144")
for v in range(5):
    A("ds_read_b32 v%d, v9 offset:%d" % (48 + 2 * v, v * 2048))
    A("ds_read_b32 v%d, v9 offset:%d" % (49 + 2 * v, v * 2048 + 16))
A("s_waitcnt lgkmcnt(10)")
for v in range(5, 8):
    pass
A("v_max3_f32 v12, v32, v33, v34")
A("v_max3_f32 v12, v12, v35, v36")
A("v_max3_f32 v12, v12, v37, v38")
A("v_max_f32 v12, v12, v39")
for v in range(8):
    A("v_sub_f32 v%d, v%d, v12" % (32 + v, 32 + v))
for v in range(8):
    A("v_mul_f32 v%d, s%d, v%d" % (32 + v, sLOG2E, 32 + v))
for v in range(8):
    A("v_exp_f32 v%d, v%d" % (32 + v, 32 + v))
A("s_waitcnt lgkmcnt(4)")
for v in range(5, 8):
    A("ds_read_b32 v%d, v9 offset:%d" % (48 + 2 * v, v * 2048))
    A("ds_read_b32 v%d, v9 offset:%d" % (49 + 2 * v, v * 2048 + 16))
A("v_mul_f32 v14, v32, v40")
for v in range(1, 8):
    A("v_fmac_f32 v14, v%d, v%d" % (32 + v, 40 + v))
A("s_waitcnt lgkmcnt(0)")
A("v_mul_f32 v16, v32, v48")
A("v_mul_f32 v18, v32, v49")
for v in range(1, 8):
    A("v_fmac_f32 v16, v%d, v%d" % (32 + v, 48 + 2 * v))
    A("v_fmac_f32 v18, v%d, v%d" % (32 + v, 49 + 2 * v))
A("v_mov_b32 v13, v%d" % vTAG)
A("v_mov_b32 v15, v%d" % vTAG)
A("v_mov_b32 v17, v%d" % vTAG)
A("v_mov_b32 v19, v%d" % vTAG)
C("slot = ((hkv*4+wave)*8 + b)*4 + c")
A("s_lshl_b32 s92, s%d, 2" % sx)
A("s_add_u32 s92, s92, s%d" % sW)
A("s_lshl_b32 s92, s92, 3")
A("s_add_u32 s92, s92, s%d" % sB)
A("s_lshl_b32 s92, s92, 2")
A("s_add_u32 s92, s92, s%d" % sCc)
A("s_lshl_b32 s93, s92, 10")
A("s_add_u32 s93, s93, %d" % OG)
A("s_lshl_b32 s92, s92, 4")
A("s_add_u32 s92, s92, %d" % MLG)
A("buffer_store_dwordx4 v[16:19], v6, %s, s93 offen sc1" % srd(sWS))
A("s_mov_b64 exec, 1")
A("buffer_store_dwordx4 v[12:15], v31, %s, s92 offen sc1" % srd(sWS))
A("s_mov_b64 exec, -1")

L("L_p8")
STAMP()
C("slot base = (j*8 + wave)*4")
A("s_lshl_b32 s92, s%d, 3" % sJ)
A("s_add_u32 s92, s92, s%d" % sW)
A("s_lshl_b32 s93, s92, 12")
A("s_add_u32 s93, s93, %d" % OG)
A("s_lshl_b32 s92, s92, 6")
A("s_add_u32 s92, s92, %d" % MLG)
A("s_mul_i32 s94, s%d, 7168" % sW)
A("s_mul_i32 s95, s%d, 896" % sx)
A("s_add_u32 s94, s94, s95")
A("s_add_u32 s94, s94, %d" % HG)
A("v_min_u32 v9, 55, v%d" % vLANE)
A("v_lshlrev_b32 v10, 4, v9")
A("v_add_u32 v11, %d, v10" % (8 * 7168))
def oload(c):
    A("buffer_load_dwordx4 v[%d:%d], v6, %s, s93 offen offset:%d sc1" % (32 + 4 * c, 35 + 4 * c, srd(sWS), c * 1024))
def hload():
    A("buffer_load_dwordx4 v[64:67], v10, %s, s94 offen sc1" % srd(sWS))
    A("buffer_load_dwordx4 v[68:71], v11, %s, s94 offen sc1" % srd(sWS))
A("v_and_b32 v18, 3, v%d" % vLANE)
A("v_lshlrev_b32 v18, 4, v18")
hload()
A("buffer_load_dwordx4 v[48:51], v18, %s, s92 offen sc1" % srd(sWS))
C("A-fragment preload for P9 (own tile)")
A("s_mov_b32 s95, 0")
A("s_cmp_gt_u32 s%d, 4" % sRL)
A("s_cbranch_scc1 L_mchk")
A("v_lshlrev_b32 v8, 8, v%d" % vG)
A("v_lshl_add_u32 v8, v%d, 3, v8" % vI)
A("s_lshl_b32 s90, s%d, 12" % sRL)
A("s_add_u32 s90, s90, %d" % L_WO)
assert L_WO + 4 * 4096 == L_WD
A("v_add_u32 v8, s90, v8")
A("s_waitcnt vmcnt(3)")
for t in range(7):
    A("ds_read_b64_tr_b16 v[%d:%d], v8 offset:%d" % (96 + 4 * t, 97 + 4 * t, t * 1024))
    A("ds_read_b64_tr_b16 v[%d:%d], v8 offset:%d" % (98 + 4 * t, 99 + 4 * t, t * 1024 + 128))
L("L_mchk")
A("s_waitcnt vmcnt(0) lgkmcnt(0)")
A("v_xor_b32 v12, v49, v%d" % vTAG)
A("v_xor_b32 v13, v51, v%d" % vTAG)
A("v_or_b32 v12, v12, v13")
A("v_cmp_eq_u32 vcc, 0, v12")
A("s_and_b32 s90, vcc_lo, 15")
A("s_andn2_b32 s90, s90, s95")
A("s_or_b32 s95, s95, s90")
for c in range(4):
    A("s_bitcmp0_b32 s90, %d" % c)
    A("s_cbranch_scc1 L_msk%d" % c)
    oload(c)
    L("L_msk%d" % c)
A("s_cmp_eq_u32 s95, 15")
A("s_cbranch_scc1 L_ochk")
A("s_add_u32 s%d, s%d, 1" % (sSPIN, sSPIN))
A("s_cmp_ge_u32 s%d, %d" % (sSPIN, opt["spin"] * 8))
A("s_cbranch_scc1 L_ochk")
A("buffer_load_dwordx4 v[48:51], v18, %s, s92 offen sc1" % srd(sWS))
A("s_branch L_mchk")
L("L_ochk")
A("s_waitcnt vmcnt(0)")
tg = [33, 35, 37, 39, 41, 43, 45, 47, 65, 67, 69, 71]
A("v_xor_b32 v12, v%d, v%d" % (tg[0], vTAG))
for t in tg[1:]:
    A("v_xor_b32 v13, v%d, v%d" % (t, vTAG))
    A("v_or_b32 v12, v12, v13")
A("v_cmp_ne_u32 vcc, 0, v12")
A("s_cbranch_vccz L_ook")
A("s_add_u32 s%d, s%d, 1" % (sSPIN, sSPIN))
A("s_cmp_ge_u32 s%d, %d" % (sSPIN, opt["spin"] * 8))
A("s_cbranch_scc1 L_ook")
for c in range(4):
    oload(c)
hload()
A("s_branch L_ochk")
L("L_ook")
STAMP()
C("broadcast M_c, L_c from lanes 0..3")
for c in range(4):
    A("v_readlane_b32 s%d, v48, %d" % (8 + c, c))
    A("v_readlane_b32 s%d, v50, %d" % (12 + c, c))
A("s_nop 1")
for c in range(4):
    A("v_mov_b32 v%d, s%d" % (48 + 4 * c, 8 + c))
    A("v_mov_b32 v%d, s%d" % (50 + 4 * c, 12 + c))
A("v_max3_f32 v12, v48, v52, v56")
A("v_max_f32 v12, v12, v60")
for c in range(4):
    A("v_sub_f32 v%d, v%d, v12" % (48 + 4 * c, 48 + 4 * c))
for c in range(4):
    A("v_mul_f32 v%d, s%d, v%d" % (48 + 4 * c, sLOG2E, 48 + 4 * c))
for c in range(4):
    A("v_exp_f32 v%d, v%d" % (48 + 4 * c, 48 + 4 * c))
unpack(64, 72, 73)
unpack(66, 74, 75)
unpack(68, 76, 77)
unpack(70, 78, 79)
for r in range(4):
    A("v_mul_f32 v%d, v%d, v%d" % (72 + r, 72 + r, 76 + r))
A("v_cvt_pk_bf16_f32 v64, v72, v73")
A("v_cvt_pk_bf16_f32 v65, v74, v75")
A("v_mul_f32 v13, v48, v50")
A("v_mul_f32 v14, v48, v32")
A("v_mul_f32 v15, v48, v34")
for c in range(1, 4):
    A("v_fmac_f32 v13, v%d, v%d" % (48 + 4 * c, 50 + 4 * c))
    A("v_fmac_f32 v14, v%d, v%d" % (48 + 4 * c, 32 + 4 * c))
    A("v_fmac_f32 v15, v%d, v%d" % (48 + 4 * c, 34 + 4 * c))
A("v_rcp_f32 v16, v13")
A("s_mul_i32 s92, s%d, %d" % (sW, HS))
A("s_add_u32 s92, s92, %d" % L_HT)
A("v_lshlrev_b32 v9, 3, v9")
A("v_add_u32 v9, s92, v9")
A("ds_write_b64 v9, v[64:65]")
for e in (14, 15):
    A("v_mul_f32 v17, v%d, v16" % e)
    A("v_fma_f32 v18, -v17, v13, v%d" % e)
    A("v_fma_f32 v%d, v18, v16, v17" % e)
A("v_cvt_pk_bf16_f32 v14, v14, v15")
A("s_mul_i32 s92, s%d, %d" % (sW, OS))
A("s_add_u32 s92, s92, %d" % L_OT)
A("v_lshlrev_b32 v9, 2, v%d" % vLANE)
A("v_add_u32 v9, s92, v9")
A("ds_write_b32 v9, v14")
A("s_waitcnt lgkmcnt(0)")
A("s_barrier")

C("P9")
A("s_cmp_gt_u32 s%d, 4" % sRL)
A("s_cbranch_scc1 L_fbar")
A("v_and_b32 v9, 7, v%d" % vI)
A("s_cmp_eq_u32 s%d, 4" % sRL)
A("s_cbranch_scc1 L_p9e")
A("v_mul_u32_u24 v7, %d, v9" % OS)
A("v_lshl_add_u32 v7, v%d, 4, v7" % vG)
A("v_add_u32 v7, %d, v7" % L_OT)
def gemv_pre(nk):
    for t in range(nk):
        A("ds_read_b128 v[%d:%d], v7 offset:%d" % (64 + 4 * t, 67 + 4 * t, t * 64))
    for t in range(nk):
        A("s_waitcnt lgkmcnt(%d)" % (nk - 1 - t))
        c = "0" if t == 0 else "v[12:15]"
        A("v_mfma_f32_16x16x32_bf16 v[12:15], v[%d:%d], v[%d:%d], %s" % (96 + 4 * t, 99 + 4 * t, 64 + 4 * t, 67 + 4 * t, c))
    A("s_nop 7")
    A("s_nop 1")
gemv_pre(4)
C("addr: voff = i*131072 + g*32 ; soff = SG + j*4096 + (64ns+16ct)*8")
A("v_lshlrev_b32 v8, 17, v%d" % vI)
A("v_lshl_add_u32 v8, v%d, 5, v8" % vG)
A("s_lshl_b32 s92, s%d, 12" % sJ)
A("s_lshl_b32 s93, s%d, 9" % sNS)
A("s_add_u32 s92, s92, s93")
A("s_lshl_b32 s93, s%d, 7" % sRL)
A("s_add_u32 s92, s92, s93")
A("s_add_u32 s92, s92, %d" % SG)
A("s_branch L_p9pub")
L("L_p9e")
A("v_mul_u32_u24 v7, %d, v9" % HS)
A("v_lshl_add_u32 v7, v%d, 4, v7" % vG)
A("v_add_u32 v7, %d, v7" % L_HT)
gemv_pre(7)
C("addr: voff = i*32768 + g*32 ; soff = DG + kg*4096 + ct*128")
A("v_lshlrev_b32 v8, 15, v%d" % vI)
A("v_lshl_add_u32 v8, v%d, 5, v8" % vG)
A("s_lshl_b32 s92, s%d, 12" % sx)
A("s_lshl_b32 s93, s%d, 7" % sy)
A("s_add_u32 s92, s92, s93")
A("s_add_u32 s92, s92, %d" % DG)
L("L_p9pub")
A("v_mov_b32 v16, v12")
A("v_mov_b32 v17, v%d" % vTAG)
A("v_mov_b32 v18, v13")
A("v_mov_b32 v19, v%d" % vTAG)
A("v_mov_b32 v20, v14")
A("v_mov_b32 v21, v%d" % vTAG)
A("v_mov_b32 v22, v15")
A("v_mov_b32 v23, v%d" % vTAG)
A("v_cmp_gt_u32 vcc, 8, v%d" % vI)
A("s_and_saveexec_b64 s[%d:%d], vcc" % (sEX, sEX + 1))
A("buffer_store_dwordx4 v[16:19], v8, %s, s92 offen sc1" % srd(sWS))
A("buffer_store_dwordx4 v[20:23], v8, %s, s92 offen offset:16 sc1" % srd(sWS))
A("s_mov_b64 exec, s[%d:%d]" % (sEX, sEX + 1))

C("P10: voff = (l>>3)*4096 + (l&7)*16")
A("v_lshrrev_b32 v8, 3, v%d" % vLANE)
A("v_and_b32 v9, 7, v%d" % vLANE)
A("v_lshlrev_b32 v10, 4, v9")
A("v_lshl_add_u32 v8, v8, 12, v10")
A("s_lshl_b32 s93, s%d, 7" % sy)
A("s_cmp_eq_u32 s%d, 4" % sRL)
A("s_cbranch_scc1 L_p10d")
A("s_lshl_b32 s92, s%d, 17" % sx)
A("s_lshl_b32 s94, s%d, 15" % sRL)
A("s_add_u32 s92, s92, s94")
A("s_add_u32 s92, s92, %d" % SG)
A("s_branch L_p10j")
L("L_p10d")
A("s_lshl_b32 s92, s%d, 15" % sx)
A("s_add_u32 s92, s92, %d" % DG)
L("L_p10j")
A("s_add_u32 s92, s92, s93")
STAMP()
NP = opt["fpipe"]
sets = [32 + 4 * k for k in range(NP)]
for k in range(NP):
    A("buffer_load_dwordx4 v[%d:%d], v8, %s, s92 offen sc1" % (sets[k], sets[k] + 3, srd(sWS)))
    if k + 1 < NP and opt["fsleep"]:
        A("s_sleep %d" % opt["fsleep"])
L("L_fretry")
for k in range(NP):
    r = sets[k]
    A("s_waitcnt vmcnt(%d)" % (NP - 1))
    A("v_xor_b32 v16, v%d, v%d" % (r + 1, vTAG))
    A("v_xor_b32 v17, v%d, v%d" % (r + 3, vTAG))
    A("v_or_b32 v16, v16, v17")
    A("v_mov_b32 v12, v%d" % r)
    A("v_mov_b32 v14, v%d" % (r + 2))
    A("v_cmp_ne_u32 vcc, 0, v16")
    A("s_cbranch_vccz L_fok")
    A("buffer_load_dwordx4 v[%d:%d], v8, %s, s92 offen sc1" % (r, r + 3, srd(sWS)))
A("s_add_u32 s%d, s%d, 1" % (sSPIN, sSPIN))
A("s_cmp_lt_u32 s%d, %d" % (sSPIN, opt["spin"] * 8))
A("s_cbranch_scc1 L_fretry")
L("L_fok")
A("s_nop 1")
A("v_add_f32_dpp v12, v12, v12 row_ror:8 row_mask:0xf bank_mask:0xf")
A("v_add_f32_dpp v14, v14, v14 row_ror:8 row_mask:0xf bank_mask:0xf")
crossrow(12, 16, "v_add_f32")
crossrow(14, 16, "v_add_f32")
A("v_mov_b32 v13, v14")
A("s_lshl_b32 s92, s%d, 6" % sRL)
A("s_add_u32 s92, s92, %d" % L_FIN)
A("v_lshlrev_b32 v9, 3, v9")
A("v_add_u32 v9, s92, v9")
A("ds_write_b64 v9, v[12:13]")
A("s_waitcnt lgkmcnt(0)")
L("L_fbar")
A("s_barrier")
STAMP()
A("s_cmp_lg_u32 s%d, 0" % sW)
A("s_cbranch_scc1 L_done")
A("v_lshlrev_b32 v9, 2, v%d" % vI)
A("v_add_u32 v9, %d, v9" % L_FIN)
for k in range(5):
    A("ds_read_b32 v%d, v9 offset:%d" % (12 + k, k * 64))
A("s_waitcnt lgkmcnt(0)")
A("v_add_f32 v12, v12, v13")
A("v_add_f32 v14, v14, v15")
A("v_add_f32 v12, v12, v14")
A("v_cvt_pk_bf16_f32 v12, v12, v16")
unpack(12, 13, 14)
A("v_mul_f32 v15, s%d, v14" % sLOG2E)
A("v_exp_f32 v15, -v15")
A("s_nop 0")
A("v_add_f32 v15, 1.0, v15")
A("v_rcp_f32 v16, v15")
A("s_nop 0")
A("v_mul_f32 v17, v14, v16")
A("v_fma_f32 v18, -v17, v15, v14")
A("v_fma_f32 v17, v18, v16, v17")
A("v_cvt_pk_bf16_f32 v17, v17, v17")
A("v_lshlrev_b32 v17, 16, v17")
A("v_mul_f32 v17, v13, v17")
A("v_cvt_pk_bf16_f32 v17, v17, v17")
A("v_lshlrev_b32 v17, 16, v17")
A("v_lshlrev_b32 v18, 16, v%d" % vXF)
A("v_add_f32 v17, v18, v17")
A("v_cvt_pk_bf16_f32 v17, v17, v17")
A("v_lshlrev_b32 v9, 1, v%d" % vI)
A("s_mov_b64 exec, 0xffff")
A("buffer_store_short v17, v9, %s, s%d offen" % (srd(sOUT), sT2))
A("s_cmp_lg_u32 s2, 0")
A("s_cbranch_scc1 L_done")
A("s_mov_b64 exec, 1")
A("buffer_store_dword v%d, v31, %s, 0 offen sc1" % (vTAG, srd(sWS)))
L("L_done")
if opt["stamps"]:
    A("s_mov_b64 exec, -1")
    A("v_writelane_b32 v128, s%d, 16" % sSPIN)
    A("s_lshl_b32 s92, s2, 3")
    A("s_add_u32 s92, s92, s%d" % sW)
    A("s_lshl_b32 s92, s92, 7")
    A("s_add_u32 s92, s92, %d" % (4 << 20))
    A("v_lshlrev_b32 v9, 2, v%d" % vLANE)
    A("s_mov_b64 exec, 0xffffffff")
    A("buffer_store_dword v128, v9, %s, s92 offen" % srd(sWS))
L("L_end")
A("s_endpgm")
out.append('.section .rodata,"a"')
out.append(".p2align 6")
out.append(".amdhsa_kernel " + K)
out.append("  .amdhsa_next_free_vgpr %d" % (136 if opt["stamps"] else 128))
out.append("  .amdhsa_next_free_sgpr %d" % (100 if opt["stamps"] else 96))
out.append("  .amdhsa_accum_offset %d" % (136 if opt["stamps"] else 128))
out.append("  .amdhsa_group_segment_fixed_size 0")
out.append("  .amdhsa_kernarg_size 96")
out.append("  .amdhsa_user_sgpr_count 2")
out.append("  .amdhsa_user_sgpr_kernarg_segment_ptr 1")
out.append("  .amdhsa_system_sgpr_workgroup_id_x 1")
out.append(".end_amdhsa_kernel")
open(sys.argv[1], "w").write("\n".join(out) + "\n")
print("LDS", LDS_BYTES, "WS", WS_BYTES, "stamps", nstamp[0])
```

```python
import sys

NAME = "recurrent_scan__sliding_block_cached__glu_gated_bilinear__decode"
HEADER = open("cdna_kernels/%s.s.ref" % NAME).read().split("; @launch")[0]

opt = dict(
    kwait=4,
    nt=0,
    spin=400000,
    sleep=0,
    stamps=0,
    ntw=0,
    exp=0,
    kearly=2,
    qpw=2,
    fpipe=3,
    fsleep=8,
    ldspad=0,
    rsh=0,
    dbg=0,
    bar0=1,
)
for a in sys.argv[2:]:
    k, v = a.split("=")
    opt[k] = int(v)

GEN = 0
QG = 4096
HG = QG + 8 * 16384
OG = 262144
MLG = OG + 32 * 8 * 4 * 1024
SG = 1376256
DG = SG + 8 * 32 * 4096
WS_BYTES = DG + 8 * 8 * 4096
assert HG + 16 * 7168 <= OG and MLG + 32 * 8 * 4 * 16 <= SG

L_WQ = 0
L_OW = 0
L_WG = 16384
L_WU = 24576
L_WO = 32768
L_WD = 49152
L_XN = 57344
XS = 1088
L_Q = L_XN + 8 * XS
L_HT = L_Q + 1024
HS = 528
L_OT = L_HT + 8 * HS
OS = 272
L_ML = L_OT + 8 * OS
L_FIN = L_ML + 256
L_FLAG = L_FIN + 320
L_QP = L_XN + 8 * XS + 1024 + 8 * HS + 8 * OS + 256 + 320 + 64
L_GP = L_HT
assert L_QP == L_FLAG + 64
LDS_BYTES = L_QP + 4096
LDS_BYTES = (LDS_BYTES + 63) // 64 * 64
if opt["ldspad"]:
    LDS_BYTES = opt["ldspad"]

out = []
def A(s): out.append("    " + s)
def L(s): out.append(s + ":")
def C(s): out.append("    ; " + s)

sX, sK, sV, sWQ, sWO, sWG, sWU, sWD, sOUT, sWS = [28 + 4 * i for i in range(10)]
def srd(r): return "s[%d:%d]" % (r, r + 3)
sW, sx, sy = 68, 69, 70
sSELLO, sSELHI, sSPIN = 80, 81, 82
sSCALE, sLOG2E = 83, 86
sEX = 84
sKVOFF, sT0, sT1, sT2, sT3 = 71, 72, 73, 74, 75
sJ, sNS, sB, sCc = 76, 77, 78, 79
sWOoff, sWDoff, sW6 = 87, 88, 89
sMAT = 87
sRL = 88

vLANE, vI, vG, vTAG, vXF = 1, 2, 3, 4, 5
NT = " nt" if opt["nt"] else ""
NTW = " nt" if opt["ntw"] else ""

nstamp = [0]
def STAMP():
    if not opt["stamps"]:
        return
    A("s_memrealtime s[96:97]")
    A("s_waitcnt lgkmcnt(0)")
    A("v_writelane_b32 v128, s96, %d" % nstamp[0])
    nstamp[0] += 1

nlab = [0]
def waitv(base):
    n = nlab[0]; nlab[0] += 1
    A("s_cmp_gt_u32 s%d, 4" % sRL)
    A("s_cbranch_scc1 L_wv%d_a" % n)
    A("s_cmp_eq_u32 s%d, 4" % sRL)
    A("s_cbranch_scc1 L_wv%d_b" % n)
    A("s_waitcnt vmcnt(%d)" % (base + 4))
    A("s_branch L_wv%d_c" % n)
    L("L_wv%d_b" % n)
    A("s_waitcnt vmcnt(%d)" % (base + 7))
    A("s_branch L_wv%d_c" % n)
    L("L_wv%d_a" % n)
    A("s_waitcnt vmcnt(%d)" % base)
    L("L_wv%d_c" % n)

def allsum(x, t):
    for m in ("quad_perm:[1,0,3,2]", "quad_perm:[2,3,0,1]", "row_half_mirror", "row_mirror"):
        A("s_nop 1")
        A("v_add_f32_dpp v%d, v%d, v%d %s row_mask:0xf bank_mask:0xf" % (x, x, x, m))
    crossrow(x, t, "v_add_f32")

def crossrow(x, t, op):
    A("v_mov_b32 v%d, v%d" % (t, x))
    A("s_nop 1")
    A("v_permlane16_swap_b32 v%d, v%d" % (x, t))
    A("%s v%d, v%d, v%d" % (op, x, x, t))
    A("v_mov_b32 v%d, v%d" % (t, x))
    A("s_nop 1")
    A("v_permlane32_swap_b32 v%d, v%d" % (x, t))
    A("%s v%d, v%d, v%d" % (op, x, x, t))

def unpack(src, lo, hi):
    A("v_lshlrev_b32 v%d, 16, v%d" % (lo, src))
    A("v_and_b32 v%d, 0xffff0000, v%d" % (hi, src))

def tagcheck(tags, ta, tb, retry):
    assert len(tags) >= 2
    A("v_min_u32 v%d, v%d, v%d" % (ta, tags[0], tags[1]))
    A("v_max_u32 v%d, v%d, v%d" % (tb, tags[0], tags[1]))
    rest = tags[2:]
    while rest:
        if len(rest) >= 2:
            A("v_min3_u32 v%d, v%d, v%d, v%d" % (ta, ta, rest[0], rest[1]))
            A("v_max3_u32 v%d, v%d, v%d, v%d" % (tb, tb, rest[0], rest[1]))
            rest = rest[2:]
        else:
            A("v_min_u32 v%d, v%d, v%d" % (ta, ta, rest[0]))
            A("v_max_u32 v%d, v%d, v%d" % (tb, tb, rest[0]))
            rest = rest[1:]
    A("v_xor_b32 v%d, v%d, v%d" % (ta, ta, vTAG))
    A("v_xor_b32 v%d, v%d, v%d" % (tb, tb, vTAG))
    A("v_or_b32 v%d, v%d, v%d" % (ta, ta, tb))
    A("v_cmp_ne_u32 vcc, 0, v%d" % ta)
    A("s_cbranch_vccz %s_ok" % retry)
    A("s_add_u32 s%d, s%d, 1" % (sSPIN, sSPIN))
    A("s_cmp_lt_u32 s%d, %d" % (sSPIN, opt["spin"]))
    if opt["sleep"]:
        A("s_sleep %d" % opt["sleep"])
    A("s_cbranch_scc1 %s" % retry)
    L(retry + "_ok")

def gemv_tile(ks, abase, astep, ahalf, bbase, acc, bank0, bank1):
    if isinstance(ks, int):
        ks = list(range(ks))
    batches = [ks[s:s + 4] for s in range(0, len(ks), 4)]
    def issue(bi):
        for n, t in enumerate(batches[bi]):
            r = (bank1 if bi & 1 else bank0) + n * 8
            A("ds_read_b64_tr_b16 v[%d:%d], v%d offset:%d" % (r, r + 1, abase, t * astep))
            A("ds_read_b64_tr_b16 v[%d:%d], v%d offset:%d" % (r + 2, r + 3, abase, t * astep + ahalf))
            A("ds_read_b128 v[%d:%d], v%d offset:%d" % (r + 4, r + 7, bbase, t * 64))
    issue(0)
    first = True
    for bi in range(len(batches)):
        A("s_waitcnt lgkmcnt(0)")
        if bi + 1 < len(batches):
            issue(bi + 1)
        for n, t in enumerate(batches[bi]):
            r = (bank1 if bi & 1 else bank0) + n * 8
            c = "0" if first else "v[%d:%d]" % (acc, acc + 3)
            first = False
            A("v_mfma_f32_16x16x32_bf16 v[%d:%d], v[%d:%d], v[%d:%d], %s" % (acc, acc + 3, r, r + 3, r + 4, r + 7, c))
    A("s_nop 7")
    A("s_nop 1")

K = NAME + "_kernel"
out.append(HEADER.rstrip("\n"))
out.append("; @launch grid=(256,1,1) block=(512,1,1) lds=%d" % LDS_BYTES)
out.append('.amdgcn_target "amdgcn-amd-amdhsa--gfx950"')
out.append(".text")
out.append(".globl " + K)
out.append(".p2align 8")
out.append(".type %s,@function" % K)
L(K)
A("s_cmp_ge_u32 s2, 256")
A("s_cbranch_scc1 L_end")
if opt["stamps"]:
    A("v_mov_b32 v128, 0")
STAMP()
A("s_load_dwordx16 s[4:19], s[0:1], 0")
A("s_load_dwordx8 s[20:27], s[0:1], 64")
A("v_lshrrev_b32 v6, 6, v0")
A("v_and_b32 v%d, 63, v0" % vLANE)
A("v_and_b32 v%d, 15, v0" % vI)
A("v_bfe_u32 v%d, v0, 4, 2" % vG)
A("v_readfirstlane_b32 s%d, v6" % sW)
A("s_add_u32 s%d, s%d, %d" % (sRL, sW, opt["rsh"]))
A("s_and_b32 s%d, s%d, 7" % (sRL, sRL))
A("s_and_b32 s%d, s2, 7" % sx)
A("s_lshr_b32 s%d, s2, 3" % sy)
A("s_mov_b32 s%d, 0x05040100" % sSELLO)
A("s_mov_b32 s%d, 0x07060302" % sSELHI)
A("s_mov_b32 s%d, 0" % sSPIN)
A("s_mov_b32 s%d, 0x3db504f3" % sSCALE)
A("s_mov_b32 s%d, 0x3fb8aa3b" % sLOG2E)
C("attention role: hkv=sx, b=sy>>2, c=sy&3")
A("s_lshr_b32 s%d, s%d, 2" % (sB, sy))
A("s_and_b32 s%d, s%d, 3" % (sCc, sy))
A("s_lshl_b32 s%d, s%d, 23" % (sKVOFF, sB))
A("s_lshl_b32 s%d, s%d, 20" % (sT0, sx))
A("s_add_u32 s%d, s%d, s%d" % (sKVOFF, sKVOFF, sT0))
A("s_lshl_b32 s%d, s%d, 16" % (sT0, sCc))
A("s_add_u32 s%d, s%d, s%d" % (sKVOFF, sKVOFF, sT0))
A("s_lshl_b32 s%d, s%d, 13" % (sT0, sW))
A("s_add_u32 s%d, s%d, s%d" % (sKVOFF, sKVOFF, sT0))
A("s_add_u32 s%d, s%d, %d" % (sKVOFF, sKVOFF, 3072 * 256))
C("o-proj role: j = sx*4 + (sy>>3), ns = sy&7")
A("s_lshl_b32 s%d, s%d, 2" % (sJ, sx))
A("s_lshr_b32 s%d, s%d, 3" % (sT0, sy))
A("s_add_u32 s%d, s%d, s%d" % (sJ, sJ, sT0))
A("s_and_b32 s%d, s%d, 7" % (sNS, sy))
C("per-lane offsets")
A("v_lshlrev_b32 v6, 4, v%d" % vLANE)
A("v_lshrrev_b32 v7, 1, v%d" % vLANE)
A("v_and_b32 v8, 1, v%d" % vLANE)
A("v_lshlrev_b32 v8, 4, v8")
A("v_lshl_add_u32 v9, v7, 13, v8")
A("v_lshl_add_u32 v28, v7, 10, v8")
A("v_mul_u32_u24 v10, 3584, v7")
A("v_add_u32 v10, v10, v8")
A("v_lshrrev_b32 v7, 3, v%d" % vLANE)
A("v_and_b32 v8, 7, v%d" % vLANE)
A("v_lshlrev_b32 v8, 4, v8")
A("v_mov_b32 v29, %d" % L_FLAG)
C("K voff = (8*(i>>2) + (i&3))*256 + g*16")
A("v_lshrrev_b32 v7, 2, v%d" % vI)
A("v_and_b32 v8, 3, v%d" % vI)
A("v_lshl_add_u32 v7, v7, 3, v8")
A("v_lshlrev_b32 v7, 8, v7")
A("v_lshl_add_u32 v11, v%d, 4, v7" % vG)
C("V voff = 8g*256 + i*16")
A("v_lshlrev_b32 v7, 11, v%d" % vG)
A("v_lshl_add_u32 v30, v%d, 4, v7" % vI)
A("v_mov_b32 v31, 0")
C("x for final: x[b_f=sx][16*sy + (l&15)]")
A("v_lshlrev_b32 v12, 1, v%d" % vI)
A("s_lshl_b32 s%d, s%d, 10" % (sT2, sx))
A("s_lshl_b32 s%d, s%d, 5" % (sT0, sy))
A("s_add_u32 s%d, s%d, s%d" % (sT2, sT2, sT0))
C("wq soffset = cb*32 + 2*wave*262144 ; cb = sx*32+sy")
A("s_lshl_b32 s%d, s%d, 5" % (sT0, sx))
A("s_add_u32 s%d, s%d, s%d" % (sT0, sT0, sy))
A("s_lshl_b32 s%d, s%d, 5" % (sT0, sT0))
A("s_lshl_b32 s%d, s%d, 19" % (sT1, sW))
A("s_add_u32 s%d, s%d, s%d" % (sT0, sT0, sT1))
C("gu tile: syc=min(sy,27); mat = syc>=14; ti = syc-14*mat; soff = 448*sx + 32*ti + 2*wave*32*3584")
A("s_min_u32 s%d, s%d, 27" % (sT3, sy))
A("s_cmp_ge_u32 s%d, 14" % sT3)
A("s_cselect_b32 s%d, 1, 0" % sMAT)
A("s_mul_i32 s%d, s%d, 14" % (sT1, sMAT))
A("s_sub_u32 s90, s%d, s%d" % (sT3, sT1))
A("s_lshl_b32 s%d, s90, 5" % sT3)
A("s_mul_i32 s%d, s%d, 448" % (sT1, sx))
A("s_add_u32 s%d, s%d, s%d" % (sT3, sT3, sT1))
A("s_mul_i32 s%d, s%d, %d" % (sT1, sW, 64 * 3584))
A("s_add_u32 s%d, s%d, s%d" % (sT3, sT3, sT1))
A("s_lshl_b32 s91, s%d, 10" % sW)
A("s_waitcnt lgkmcnt(0)")
def mksrd(r, p, nbytes):
    A("s_mov_b32 s%d, s%d" % (r, p))
    A("s_and_b32 s%d, s%d, 0xffff" % (r + 1, p + 1))
    A("s_mov_b32 s%d, %d" % (r + 2, nbytes))
    A("s_mov_b32 s%d, 0x00020000" % (r + 3))
mksrd(sWS, 26, (8 << 20) if opt["stamps"] else WS_BYTES)
mksrd(sX, 4, 8192)
mksrd(sWQ, 10, 512 * 4096 * 2)
STAMP()
C("first loads")
A("s_load_dword s95, s[26:27], 0")
A("buffer_load_ushort v%d, v12, %s, s%d offen" % (vXF, srd(sX), sT2))
A("buffer_load_dwordx4 v[20:23], v6, %s, s91 offen" % srd(sX))
A("s_lshl_b32 s92, s91, 1")
A("s_add_u32 s92, s92, %d" % L_WQ)
A("s_mov_b32 m0, s92")
A("s_add_u32 s93, s%d, 262144" % sT0)
A("buffer_load_dwordx4 v9, %s, s%d offen%s lds" % (srd(sWQ), sT0, NTW))
A("s_add_u32 s92, s92, 1024")
A("s_mov_b32 m0, s92")
mksrd(sK, 6, 64 << 20)
A("buffer_load_dwordx4 v9, %s, s93 offen%s lds" % (srd(sWQ), NTW))
A("s_cmp_eq_u32 s%d, 0" % sMAT)
A("s_cselect_b32 s16, s16, s18")
A("s_cselect_b32 s17, s17, s19")
mksrd(sWG, 16, 512 * 1792 * 2)
A("s_lshl_b32 s92, s91, 1")
A("s_add_u32 s92, s92, %d" % L_WG)
A("s_mov_b32 m0, s92")
A("s_add_u32 s93, s%d, %d" % (sT3, 32 * 3584))
A("buffer_load_dwordx4 v10, %s, s%d offen%s lds" % (srd(sWG), sT3, NTW))
A("s_add_u32 s92, s92, 1024")
A("s_mov_b32 m0, s92")
A("s_nop 0")
A("buffer_load_dwordx4 v10, %s, s93 offen%s lds" % (srd(sWG), NTW))
if opt["bar0"]:
    A("s_barrier")
KE = opt["kearly"]
def kloads(lo, hi):
    for n in range(lo, hi):
        T, t = n >> 2, n & 3
        r = 32 + n * 4
        A("buffer_load_dwordx4 v[%d:%d], v11, %s, s%d offen offset:%d%s" % (r, r + 3, srd(sK), sKVOFF, T * 1024 + t * 64, NT))
kloads(0, KE)
mksrd(sV, 8, 64 << 20)
mksrd(sWO, 12, 4096 * 512 * 2)
mksrd(sWD, 20, 1792 * 512 * 2)
mksrd(sOUT, 22, 8192)

C("P1 layernorm")
A("s_waitcnt vmcnt(%d)" % (4 + KE))
STAMP()
A("s_waitcnt lgkmcnt(0)")
A("s_add_u32 s95, s95, 1")
A("v_mov_b32 v%d, s95" % vTAG)
for k in range(4):
    unpack(20 + k, 12 + 2 * k, 13 + 2 * k)
A("v_add_f32 v20, v12, v13")
A("v_add_f32 v21, v14, v15")
A("v_add_f32 v22, v16, v17")
A("v_add_f32 v23, v18, v19")
A("v_add_f32 v20, v20, v21")
A("v_add_f32 v22, v22, v23")
A("v_add_f32 v20, v20, v22")
allsum(20, 21)
A("v_mul_f32 v20, 0x3b000000, v20")
A("v_sub_f32 v21, v12, v20")
A("v_mul_f32 v22, v21, v21")
for k in range(1, 8):
    A("v_sub_f32 v21, v%d, v20" % (12 + k))
    A("v_fmac_f32 v22, v21, v21")
allsum(22, 21)
A("v_mul_f32 v22, 0x3b000000, v22")
A("v_cvt_pk_bf16_f32 v20, v20, v22")
A("v_and_b32 v22, 0xffff0000, v20")
A("v_lshlrev_b32 v20, 16, v20")
A("v_add_f32 v22, 0x3727c5ac, v22")
A("v_cvt_pk_bf16_f32 v22, v22, v22")
A("v_lshlrev_b32 v22, 16, v22")
A("v_sqrt_f32 v22, v22")
A("s_nop 0")
A("v_cvt_pk_bf16_f32 v22, v22, v22")
A("v_lshlrev_b32 v22, 16, v22")
A("v_rcp_f32 v23, v22")
for k in range(4):
    a, b = 12 + 2 * k, 13 + 2 * k
    A("v_sub_f32 v%d, v%d, v20" % (a, a))
    A("v_sub_f32 v%d, v%d, v20" % (b, b))
    A("v_cvt_pk_bf16_f32 v21, v%d, v%d" % (a, b))
    unpack(21, a, b)
    for e in (a, b):
        A("v_mul_f32 v21, v%d, v23" % e)
        A("v_fma_f32 v24, -v21, v22, v%d" % e)
        A("v_fma_f32 v%d, v24, v23, v21" % e)
    A("v_cvt_pk_bf16_f32 v%d, v%d, v%d" % (96 + k, a, b))
A("s_mul_i32 s92, s%d, %d" % (sW, XS))
A("s_add_u32 s92, s92, %d" % L_XN)
A("v_add_u32 v7, s92, v6")
A("ds_write_b128 v7, v[96:99]")
A("ds_write_b32 v29, v31")
A("s_waitcnt vmcnt(%d) lgkmcnt(0)" % KE)
STAMP()
A("s_barrier")
STAMP()

C("P2")
A("v_and_b32 v7, 7, v%d" % vI)
A("v_mul_u32_u24 v7, %d, v7" % XS)
A("v_lshl_add_u32 v7, v%d, 4, v7" % vG)
A("v_add_u32 v7, %d, v7" % L_XN)
A("s_lshl_b32 s92, s%d, 7" % sW)
A("v_add_u32 v16, s92, v7")
A("v_lshlrev_b32 v8, 8, v%d" % vG)
A("v_lshl_add_u32 v8, v%d, 3, v8" % vI)
A("s_lshl_b32 s92, s%d, 11" % sW)
A("s_add_u32 s92, s92, %d" % L_WQ)
A("v_add_u32 v8, s92, v8")
A("v_add_u32 v9, %d, v8" % (L_WG - L_WQ))
for n in range(2):
    A("ds_read_b64_tr_b16 v[%d:%d], v8 offset:%d" % (64 + 4 * n, 65 + 4 * n, n * 1024))
    A("ds_read_b64_tr_b16 v[%d:%d], v8 offset:%d" % (66 + 4 * n, 67 + 4 * n, n * 1024 + 128))
    A("ds_read_b128 v[%d:%d], v16 offset:%d" % (80 + 4 * n, 83 + 4 * n, n * 64))
for n in range(2):
    A("ds_read_b64_tr_b16 v[%d:%d], v9 offset:%d" % (72 + 4 * n, 73 + 4 * n, n * 1024))
    A("ds_read_b64_tr_b16 v[%d:%d], v9 offset:%d" % (74 + 4 * n, 75 + 4 * n, n * 1024 + 128))
A("s_waitcnt lgkmcnt(4)")
A("v_mfma_f32_16x16x32_bf16 v[12:15], v[64:67], v[80:83], 0")
A("v_mfma_f32_16x16x32_bf16 v[12:15], v[68:71], v[84:87], v[12:15]")
A("s_waitcnt lgkmcnt(0)")
A("v_mfma_f32_16x16x32_bf16 v[16:19], v[72:75], v[80:83], 0")
A("v_mfma_f32_16x16x32_bf16 v[16:19], v[76:79], v[84:87], v[16:19]")
C("partials -> L_QP/L_GP + wave*512 + (g*8 + i)*16 for i<8")
A("v_lshl_add_u32 v8, v%d, 3, v%d" % (vG, vI))
A("v_lshlrev_b32 v8, 4, v8")
A("v_add_u32 v8, %d, v8" % L_QP)
A("s_lshl_b32 s92, s%d, 9" % sW)
A("v_add_u32 v9, s92, v8")
A("v_cmp_gt_u32 vcc, 8, v%d" % vI)
A("s_and_saveexec_b64 s[%d:%d], vcc" % (sEX, sEX + 1))
A("s_nop 7")
A("ds_write_b128 v9, v[12:15]")
A("v_subrev_u32 v9, %d, v9" % (L_QP - L_GP))
A("ds_write_b128 v9, v[16:19]")
A("s_mov_b64 exec, s[%d:%d]" % (sEX, sEX + 1))
A("s_waitcnt lgkmcnt(0)")
A("s_barrier")
A("s_cmp_gt_u32 s%d, 1" % sW)
A("s_cbranch_scc1 L_p3")
C("wave 0 reduces q, wave 1 reduces gate/up")
A("s_mul_i32 s92, s%d, %d" % (sW, L_QP - L_GP))
A("v_subrev_u32 v8, s92, v8")
A("v_cmp_gt_u32 vcc, 8, v%d" % vI)
A("s_and_saveexec_b64 s[%d:%d], vcc" % (sEX, sEX + 1))
for v in range(8):
    A("ds_read_b128 v[%d:%d], v8 offset:%d" % (64 + 4 * v, 67 + 4 * v, v * 512))
A("s_cmp_eq_u32 s%d, 1" % sW)
A("s_cbranch_scc1 L_p2g")
C("q: addr = QG + b*16384 + cb*64 + g*16")
A("v_lshlrev_b32 v8, 14, v%d" % vI)
A("s_lshl_b32 s92, s%d, 5" % sx)
A("s_add_u32 s92, s92, s%d" % sy)
A("s_lshl_b32 s92, s92, 6")
A("s_add_u32 s92, s92, %d" % QG)
A("s_branch L_p2j")
L("L_p2g")
C("gu: addr = HG + (mat*8 + b)*7168 + sx*896 + ti*64 + g*16 ; skip if sy>=28")
A("v_mul_u32_u24 v8, 7168, v%d" % vI)
A("s_mul_i32 s92, s%d, %d" % (sMAT, 8 * 7168))
A("s_mul_i32 s93, s%d, 896" % sx)
A("s_add_u32 s92, s92, s93")
A("s_lshl_b32 s93, s90, 6")
A("s_add_u32 s92, s92, s93")
A("s_add_u32 s92, s92, %d" % HG)
A("s_cmp_lt_u32 s%d, 28" % sy)
A("s_cbranch_scc1 L_p2j")
A("s_waitcnt lgkmcnt(0)")
A("s_mov_b64 exec, s[%d:%d]" % (sEX, sEX + 1))
A("s_branch L_p3")
L("L_p2j")
A("v_lshl_add_u32 v8, v%d, 4, v8" % vG)
A("s_waitcnt lgkmcnt(0)")
for v in range(1, 8):
    for r in range(4):
        A("v_add_f32 v%d, v%d, v%d" % (64 + r, 64 + r, 64 + 4 * v + r))
A("v_cvt_pk_bf16_f32 v16, v64, v65")
A("v_cvt_pk_bf16_f32 v18, v66, v67")
A("v_mov_b32 v17, v%d" % vTAG)
A("v_mov_b32 v19, v%d" % vTAG)
A("buffer_store_dwordx4 v[16:19], v8, %s, s92 offen sc1" % srd(sWS))
A("s_mov_b64 exec, s[%d:%d]" % (sEX, sEX + 1))

L("L_p3")
STAMP()
kloads(KE, 8)
for e in range(8):
    r = 64 + e * 4
    A("buffer_load_dwordx4 v[%d:%d], v30, %s, s%d offen offset:%d%s" % (r, r + 3, srd(sV), sKVOFF, e * 256, NT))
A("s_cmp_gt_u32 s%d, 4" % sRL)
A("s_cbranch_scc1 L_p3x")
A("s_cmp_eq_u32 s%d, 4" % sRL)
A("s_cbranch_scc1 L_p3d")
C("wo column tile: soff = (128j + 32q)*1024 + ns*128 + wave*32 ; LDS L_WO + wave*4096 + q*1024")
A("s_lshl_b32 s92, s%d, 17" % sJ)
A("s_lshl_b32 s93, s%d, 7" % sNS)
A("s_add_u32 s92, s92, s93")
A("s_lshl_b32 s93, s%d, 5" % sRL)
A("s_add_u32 s92, s92, s93")
A("s_lshl_b32 s93, s%d, 12" % sRL)
A("s_add_u32 s93, s93, %d" % L_WO)
for q in range(4):
    A("s_mov_b32 m0, s93")
    A("s_add_u32 s93, s93, 1024")
    A("buffer_load_dwordx4 v28, %s, s92 offen%s lds" % (srd(sWO), NTW))
    A("s_add_u32 s92, s92, 32768")
A("s_branch L_p3x")
L("L_p3d")
C("wd tile: soff = (224kg + 32q)*1024 + ct*32")
A("s_mul_i32 s92, s%d, %d" % (sx, 224 * 1024))
A("s_lshl_b32 s93, s%d, 5" % sy)
A("s_add_u32 s92, s92, s93")
A("s_mov_b32 s93, %d" % L_WD)
for q in range(7):
    A("s_mov_b32 m0, s93")
    A("s_add_u32 s93, s93, 1024")
    A("buffer_load_dwordx4 v28, %s, s92 offen%s lds" % (srd(sWD), NTW))
    A("s_add_u32 s92, s92, 32768")
L("L_p3x")
STAMP()
A("s_cmp_lg_u32 s%d, %d" % (sW, opt["qpw"]))
A("s_cbranch_scc1 L_qf")
C("q poll addr = QG + b*16384 + hkv*2048 + l*32")
A("s_lshl_b32 s92, s%d, 14" % sB)
A("s_lshl_b32 s93, s%d, 11" % sx)
A("s_add_u32 s92, s92, s93")
A("s_add_u32 s92, s92, %d" % QG)
A("v_lshlrev_b32 v8, 5, v%d" % vLANE)
L("L_qretry")
A("buffer_load_dwordx4 v[12:15], v8, %s, s92 offen sc1" % srd(sWS))
A("buffer_load_dwordx4 v[16:19], v8, %s, s92 offen offset:16 sc1" % srd(sWS))
A("s_waitcnt vmcnt(0)")
tagcheck([13, 15, 17, 19], 20, 21, "L_qretry")
A("v_mov_b32 v20, v12")
A("v_mov_b32 v21, v14")
A("v_mov_b32 v22, v16")
A("v_mov_b32 v23, v18")
A("v_mov_b32 v9, 1")
A("v_add_u32 v8, %d, v6" % L_Q)
A("ds_write_b128 v8, v[20:23]")
A("s_waitcnt lgkmcnt(0)")
A("ds_write_b32 v29, v9")
C("wait for q flag in LDS")
L("L_qf")
A("ds_read_b32 v12, v29")
A("s_waitcnt lgkmcnt(0)")
A("v_readfirstlane_b32 s92, v12")
A("s_add_u32 s%d, s%d, 1" % (sSPIN, sSPIN))
A("s_cmp_eq_u32 s92, 1")
A("s_cbranch_scc1 L_qf_ok")
A("s_cmp_lt_u32 s%d, %d" % (sSPIN, opt["spin"] * 8))
A("s_cbranch_scc1 L_qf")
L("L_qf_ok")
STAMP()

C("P5")
A("v_and_b32 v9, 3, v%d" % vI)
A("v_lshlrev_b32 v9, 8, v9")
A("v_lshl_add_u32 v9, v%d, 4, v9" % vG)
A("v_add_u32 v9, %d, v9" % L_Q)
for t in range(4):
    A("ds_read_b128 v[%d:%d], v9 offset:%d" % (96 + 4 * t, 99 + 4 * t, t * 64))
waitv(8)
A("s_waitcnt lgkmcnt(0)")
for T in range(2):
    for t in range(4):
        r = 32 + (T * 4 + t) * 4
        acc = 112 + 4 * T
        c = "0" if t == 0 else "v[%d:%d]" % (acc, acc + 3)
        A("v_mfma_f32_16x16x32_bf16 v[%d:%d], v[%d:%d], v[%d:%d], %s" % (acc, acc + 3, r, r + 3, 96 + 4 * t, 99 + 4 * t, c))
A("s_nop 7")
A("s_nop 1")
for k in range(4):
    A("v_cvt_pk_bf16_f32 v%d, v%d, v%d" % (20 + k, 112 + 2 * k, 113 + 2 * k))
for k in range(4):
    unpack(20 + k, 12 + 2 * k, 13 + 2 * k)
for k in range(8):
    A("v_mul_f32 v%d, s%d, v%d" % (12 + k, sSCALE, 12 + k))
for k in range(4):
    A("v_cvt_pk_bf16_f32 v%d, v%d, v%d" % (20 + k, 12 + 2 * k, 13 + 2 * k))
for k in range(4):
    unpack(20 + k, 12 + 2 * k, 13 + 2 * k)
A("v_max3_f32 v20, v12, v13, v14")
A("v_max3_f32 v20, v20, v15, v16")
A("v_max3_f32 v20, v20, v17, v18")
A("v_max_f32 v20, v20, v19")
crossrow(20, 21, "v_max_f32")
for k in range(8):
    A("v_sub_f32 v%d, v%d, v20" % (12 + k, 12 + k))
for k in range(8):
    A("v_mul_f32 v%d, s%d, v%d" % (12 + k, sLOG2E, 12 + k))
for k in range(8):
    A("v_exp_f32 v%d, v%d" % (12 + k, 12 + k))
A("s_nop 0")
A("v_add_f32 v22, v12, v13")
A("v_add_f32 v23, v14, v15")
A("v_add_f32 v22, v22, v16")
A("v_add_f32 v23, v23, v17")
A("v_add_f32 v22, v22, v18")
A("v_add_f32 v23, v23, v19")
A("v_add_f32 v22, v22, v23")
crossrow(22, 21, "v_add_f32")
for k in range(4):
    A("v_cvt_pk_bf16_f32 v%d, v%d, v%d" % (24 + k, 12 + 2 * k, 13 + 2 * k))

C("P6")
C("LDS addr for partial O: L_OW + wave*2048 + i*512 + g*128 (+j*16)")
A("s_lshl_b32 s92, s%d, 11" % sW)
A("s_add_u32 s92, s92, %d" % L_OW)
A("v_lshlrev_b32 v9, 9, v%d" % vI)
A("v_lshl_add_u32 v9, v%d, 7, v9" % vG)
A("v_add_u32 v9, s92, v9")
A("s_lshl_b32 s92, s%d, 2" % sW)
A("s_add_u32 s92, s92, %d" % L_ML)
A("v_lshlrev_b32 v10, 5, v%d" % vI)
A("v_add_u32 v10, s92, v10")
STAMP()
waitv(0)
STAMP()
for j in range(8):
    w = j >> 1
    sel = sSELHI if (j & 1) else sSELLO
    for u in range(4):
        A("v_perm_b32 v%d, v%d, v%d, s%d" % (32 + 4 * j + u, 64 + 4 * (2 * u + 1) + w, 64 + 4 * (2 * u) + w, sel))
A("s_nop 1")
for j in range(8):
    A("v_mfma_f32_16x16x32_bf16 v[%d:%d], v[%d:%d], v[24:27], 0" % (64 + 4 * j, 67 + 4 * j, 32 + 4 * j, 35 + 4 * j))
A("v_cmp_gt_u32 vcc, 4, v%d" % vI)
A("s_and_saveexec_b64 s[%d:%d], vcc" % (sEX, sEX + 1))
A("ds_write_b32 v10, v20")
A("ds_write_b32 v10, v22 offset:128")
A("s_nop 7")
for j in range(8):
    A("ds_write_b128 v9, v[%d:%d] offset:%d" % (64 + 4 * j, 67 + 4 * j, j * 16))
A("s_mov_b64 exec, s[%d:%d]" % (sEX, sEX + 1))
A("s_waitcnt lgkmcnt(0)")
A("s_barrier")

C("P7")
A("s_cmp_ge_u32 s%d, 4" % sW)
A("s_cbranch_scc1 L_p8")
C("addr = L_OW + h*512 + (l>>4)*128 + (l&3)*32 + ((l>>2)&3)*4")
A("s_lshl_b32 s92, s%d, 9" % sW)
A("s_add_u32 s92, s92, %d" % L_OW)
A("v_lshlrev_b32 v9, 7, v%d" % vG)
A("v_and_b32 v10, 3, v%d" % vLANE)
A("v_lshl_add_u32 v9, v10, 5, v9")
A("v_bfe_u32 v10, v%d, 2, 2" % vLANE)
A("v_lshl_add_u32 v9, v10, 2, v9")
A("v_add_u32 v9, s92, v9")
A("s_lshl_b32 s92, s%d, 5" % sW)
A("s_add_u32 s92, s92, %d" % L_ML)
A("v_mov_b32 v10, s92")
A("ds_read_b128 v[32:35], v10")
A("ds_read_b128 v[36:39], v10 offset:16")
A("ds_read_b128 v[40:43], v10 offset:128")
A("ds_read_b128 v[44:47], v10 offset:144")
for v in range(5):
    A("ds_read_b32 v%d, v9 offset:%d" % (48 + 2 * v, v * 2048))
    A("ds_read_b32 v%d, v9 offset:%d" % (49 + 2 * v, v * 2048 + 16))
A("s_waitcnt lgkmcnt(10)")
for v in range(5, 8):
    pass
A("v_max3_f32 v12, v32, v33, v34")
A("v_max3_f32 v12, v12, v35, v36")
A("v_max3_f32 v12, v12, v37, v38")
A("v_max_f32 v12, v12, v39")
for v in range(8):
    A("v_sub_f32 v%d, v%d, v12" % (32 + v, 32 + v))
for v in range(8):
    A("v_mul_f32 v%d, s%d, v%d" % (32 + v, sLOG2E, 32 + v))
for v in range(8):
    A("v_exp_f32 v%d, v%d" % (32 + v, 32 + v))
A("s_waitcnt lgkmcnt(4)")
for v in range(5, 8):
    A("ds_read_b32 v%d, v9 offset:%d" % (48 + 2 * v, v * 2048))
    A("ds_read_b32 v%d, v9 offset:%d" % (49 + 2 * v, v * 2048 + 16))
A("v_mul_f32 v14, v32, v40")
for v in range(1, 8):
    A("v_fmac_f32 v14, v%d, v%d" % (32 + v, 40 + v))
A("s_waitcnt lgkmcnt(0)")
A("v_mul_f32 v16, v32, v48")
A("v_mul_f32 v18, v32, v49")
for v in range(1, 8):
    A("v_fmac_f32 v16, v%d, v%d" % (32 + v, 48 + 2 * v))
    A("v_fmac_f32 v18, v%d, v%d" % (32 + v, 49 + 2 * v))
A("v_mov_b32 v13, v%d" % vTAG)
A("v_mov_b32 v15, v%d" % vTAG)
A("v_mov_b32 v17, v%d" % vTAG)
A("v_mov_b32 v19, v%d" % vTAG)
C("slot = ((hkv*4+wave)*8 + b)*4 + c")
A("s_lshl_b32 s92, s%d, 2" % sx)
A("s_add_u32 s92, s92, s%d" % sW)
A("s_lshl_b32 s92, s92, 3")
A("s_add_u32 s92, s92, s%d" % sB)
A("s_lshl_b32 s92, s92, 2")
A("s_add_u32 s92, s92, s%d" % sCc)
A("s_lshl_b32 s93, s92, 10")
A("s_add_u32 s93, s93, %d" % OG)
A("s_lshl_b32 s92, s92, 4")
A("s_add_u32 s92, s92, %d" % MLG)
A("buffer_store_dwordx4 v[16:19], v6, %s, s93 offen sc1" % srd(sWS))
A("s_mov_b64 exec, 1")
A("buffer_store_dwordx4 v[12:15], v31, %s, s92 offen sc1" % srd(sWS))
A("s_mov_b64 exec, -1")

L("L_p8")
STAMP()
C("slot base = (j*8 + wave)*4")
A("s_lshl_b32 s92, s%d, 3" % sJ)
A("s_add_u32 s92, s92, s%d" % sW)
A("s_lshl_b32 s93, s92, 12")
A("s_add_u32 s93, s93, %d" % OG)
A("s_lshl_b32 s92, s92, 6")
A("s_add_u32 s92, s92, %d" % MLG)
A("s_mul_i32 s94, s%d, 7168" % sW)
A("s_mul_i32 s95, s%d, 896" % sx)
A("s_add_u32 s94, s94, s95")
A("s_add_u32 s94, s94, %d" % HG)
A("v_min_u32 v9, 55, v%d" % vLANE)
A("v_lshlrev_b32 v10, 4, v9")
A("v_add_u32 v11, %d, v10" % (8 * 7168))
def oload(c):
    A("buffer_load_dwordx4 v[%d:%d], v6, %s, s93 offen offset:%d sc1" % (32 + 4 * c, 35 + 4 * c, srd(sWS), c * 1024))
def hload():
    A("buffer_load_dwordx4 v[64:67], v10, %s, s94 offen sc1" % srd(sWS))
    A("buffer_load_dwordx4 v[68:71], v11, %s, s94 offen sc1" % srd(sWS))
A("v_and_b32 v18, 3, v%d" % vLANE)
A("v_lshlrev_b32 v18, 4, v18")
hload()
A("buffer_load_dwordx4 v[48:51], v18, %s, s92 offen sc1" % srd(sWS))
C("A-fragment preload for P9 (own tile)")
A("s_mov_b32 s95, 0")
A("s_cmp_gt_u32 s%d, 4" % sRL)
A("s_cbranch_scc1 L_mchk")
A("v_lshlrev_b32 v8, 8, v%d" % vG)
A("v_lshl_add_u32 v8, v%d, 3, v8" % vI)
A("s_lshl_b32 s90, s%d, 12" % sRL)
A("s_add_u32 s90, s90, %d" % L_WO)
assert L_WO + 4 * 4096 == L_WD
A("v_add_u32 v8, s90, v8")
A("s_waitcnt vmcnt(3)")
for t in range(7):
    A("ds_read_b64_tr_b16 v[%d:%d], v8 offset:%d" % (96 + 4 * t, 97 + 4 * t, t * 1024))
    A("ds_read_b64_tr_b16 v[%d:%d], v8 offset:%d" % (98 + 4 * t, 99 + 4 * t, t * 1024 + 128))
L("L_mchk")
A("s_waitcnt vmcnt(0) lgkmcnt(0)")
A("v_xor_b32 v12, v49, v%d" % vTAG)
A("v_xor_b32 v13, v51, v%d" % vTAG)
A("v_or_b32 v12, v12, v13")
A("v_cmp_eq_u32 vcc, 0, v12")
A("s_and_b32 s90, vcc_lo, 15")
A("s_andn2_b32 s90, s90, s95")
A("s_or_b32 s95, s95, s90")
for c in range(4):
    A("s_bitcmp0_b32 s90, %d" % c)
    A("s_cbranch_scc1 L_msk%d" % c)
    oload(c)
    L("L_msk%d" % c)
A("s_cmp_eq_u32 s95, 15")
A("s_cbranch_scc1 L_ochk")
A("s_add_u32 s%d, s%d, 1" % (sSPIN, sSPIN))
A("s_cmp_ge_u32 s%d, %d" % (sSPIN, opt["spin"] * 8))
A("s_cbranch_scc1 L_ochk")
A("buffer_load_dwordx4 v[48:51], v18, %s, s92 offen sc1" % srd(sWS))
A("s_branch L_mchk")
L("L_ochk")
A("s_waitcnt vmcnt(0)")
tg = [33, 35, 37, 39, 41, 43, 45, 47, 65, 67, 69, 71]
A("v_xor_b32 v12, v%d, v%d" % (tg[0], vTAG))
for t in tg[1:]:
    A("v_xor_b32 v13, v%d, v%d" % (t, vTAG))
    A("v_or_b32 v12, v12, v13")
A("v_cmp_ne_u32 vcc, 0, v12")
A("s_cbranch_vccz L_ook")
A("s_add_u32 s%d, s%d, 1" % (sSPIN, sSPIN))
A("s_cmp_ge_u32 s%d, %d" % (sSPIN, opt["spin"] * 8))
A("s_cbranch_scc1 L_ook")
for c in range(4):
    oload(c)
hload()
A("s_branch L_ochk")
L("L_ook")
STAMP()
C("broadcast M_c, L_c from lanes 0..3")
for c in range(4):
    A("v_readlane_b32 s%d, v48, %d" % (8 + c, c))
    A("v_readlane_b32 s%d, v50, %d" % (12 + c, c))
A("s_nop 1")
for c in range(4):
    A("v_mov_b32 v%d, s%d" % (48 + 4 * c, 8 + c))
    A("v_mov_b32 v%d, s%d" % (50 + 4 * c, 12 + c))
A("v_max3_f32 v12, v48, v52, v56")
A("v_max_f32 v12, v12, v60")
for c in range(4):
    A("v_sub_f32 v%d, v%d, v12" % (48 + 4 * c, 48 + 4 * c))
for c in range(4):
    A("v_mul_f32 v%d, s%d, v%d" % (48 + 4 * c, sLOG2E, 48 + 4 * c))
for c in range(4):
    A("v_exp_f32 v%d, v%d" % (48 + 4 * c, 48 + 4 * c))
unpack(64, 72, 73)
unpack(66, 74, 75)
unpack(68, 76, 77)
unpack(70, 78, 79)
for r in range(4):
    A("v_mul_f32 v%d, v%d, v%d" % (72 + r, 72 + r, 76 + r))
A("v_cvt_pk_bf16_f32 v64, v72, v73")
A("v_cvt_pk_bf16_f32 v65, v74, v75")
A("v_mul_f32 v13, v48, v50")
A("v_mul_f32 v14, v48, v32")
A("v_mul_f32 v15, v48, v34")
for c in range(1, 4):
    A("v_fmac_f32 v13, v%d, v%d" % (48 + 4 * c, 50 + 4 * c))
    A("v_fmac_f32 v14, v%d, v%d" % (48 + 4 * c, 32 + 4 * c))
    A("v_fmac_f32 v15, v%d, v%d" % (48 + 4 * c, 34 + 4 * c))
A("v_rcp_f32 v16, v13")
A("s_mul_i32 s92, s%d, %d" % (sW, HS))
A("s_add_u32 s92, s92, %d" % L_HT)
A("v_lshlrev_b32 v9, 3, v9")
A("v_add_u32 v9, s92, v9")
A("ds_write_b64 v9, v[64:65]")
for e in (14, 15):
    A("v_mul_f32 v17, v%d, v16" % e)
    A("v_fma_f32 v18, -v17, v13, v%d" % e)
    A("v_fma_f32 v%d, v18, v16, v17" % e)
A("v_cvt_pk_bf16_f32 v14, v14, v15")
A("s_mul_i32 s92, s%d, %d" % (sW, OS))
A("s_add_u32 s92, s92, %d" % L_OT)
A("v_lshlrev_b32 v9, 2, v%d" % vLANE)
A("v_add_u32 v9, s92, v9")
A("ds_write_b32 v9, v14")
A("s_waitcnt lgkmcnt(0)")
A("s_barrier")

C("P9")
A("s_cmp_gt_u32 s%d, 4" % sRL)
A("s_cbranch_scc1 L_fbar")
A("v_and_b32 v9, 7, v%d" % vI)
A("s_cmp_eq_u32 s%d, 4" % sRL)
A("s_cbranch_scc1 L_p9e")
A("v_mul_u32_u24 v7, %d, v9" % OS)
A("v_lshl_add_u32 v7, v%d, 4, v7" % vG)
A("v_add_u32 v7, %d, v7" % L_OT)
def gemv_pre(nk):
    for t in range(nk):
        A("ds_read_b128 v[%d:%d], v7 offset:%d" % (64 + 4 * t, 67 + 4 * t, t * 64))
    for t in range(nk):
        A("s_waitcnt lgkmcnt(%d)" % (nk - 1 - t))
        c = "0" if t == 0 else "v[12:15]"
        A("v_mfma_f32_16x16x32_bf16 v[12:15], v[%d:%d], v[%d:%d], %s" % (96 + 4 * t, 99 + 4 * t, 64 + 4 * t, 67 + 4 * t, c))
    A("s_nop 7")
    A("s_nop 1")
gemv_pre(4)
C("addr: voff = i*131072 + g*32 ; soff = SG + j*4096 + (64ns+16ct)*8")
A("v_lshlrev_b32 v8, 17, v%d" % vI)
A("v_lshl_add_u32 v8, v%d, 5, v8" % vG)
A("s_lshl_b32 s92, s%d, 12" % sJ)
A("s_lshl_b32 s93, s%d, 9" % sNS)
A("s_add_u32 s92, s92, s93")
A("s_lshl_b32 s93, s%d, 7" % sRL)
A("s_add_u32 s92, s92, s93")
A("s_add_u32 s92, s92, %d" % SG)
A("s_branch L_p9pub")
L("L_p9e")
A("v_mul_u32_u24 v7, %d, v9" % HS)
A("v_lshl_add_u32 v7, v%d, 4, v7" % vG)
A("v_add_u32 v7, %d, v7" % L_HT)
gemv_pre(7)
C("addr: voff = i*32768 + g*32 ; soff = DG + kg*4096 + ct*128")
A("v_lshlrev_b32 v8, 15, v%d" % vI)
A("v_lshl_add_u32 v8, v%d, 5, v8" % vG)
A("s_lshl_b32 s92, s%d, 12" % sx)
A("s_lshl_b32 s93, s%d, 7" % sy)
A("s_add_u32 s92, s92, s93")
A("s_add_u32 s92, s92, %d" % DG)
L("L_p9pub")
A("v_mov_b32 v16, v12")
A("v_mov_b32 v17, v%d" % vTAG)
A("v_mov_b32 v18, v13")
A("v_mov_b32 v19, v%d" % vTAG)
A("v_mov_b32 v20, v14")
A("v_mov_b32 v21, v%d" % vTAG)
A("v_mov_b32 v22, v15")
A("v_mov_b32 v23, v%d" % vTAG)
A("v_cmp_gt_u32 vcc, 8, v%d" % vI)
A("s_and_saveexec_b64 s[%d:%d], vcc" % (sEX, sEX + 1))
A("buffer_store_dwordx4 v[16:19], v8, %s, s92 offen sc1" % srd(sWS))
A("buffer_store_dwordx4 v[20:23], v8, %s, s92 offen offset:16 sc1" % srd(sWS))
A("s_mov_b64 exec, s[%d:%d]" % (sEX, sEX + 1))

C("P10: voff = (l>>3)*4096 + (l&7)*16")
A("v_lshrrev_b32 v8, 3, v%d" % vLANE)
A("v_and_b32 v9, 7, v%d" % vLANE)
A("v_lshlrev_b32 v10, 4, v9")
A("v_lshl_add_u32 v8, v8, 12, v10")
A("s_lshl_b32 s93, s%d, 7" % sy)
A("s_cmp_eq_u32 s%d, 4" % sRL)
A("s_cbranch_scc1 L_p10d")
A("s_lshl_b32 s92, s%d, 17" % sx)
A("s_lshl_b32 s94, s%d, 15" % sRL)
A("s_add_u32 s92, s92, s94")
A("s_add_u32 s92, s92, %d" % SG)
A("s_branch L_p10j")
L("L_p10d")
A("s_lshl_b32 s92, s%d, 15" % sx)
A("s_add_u32 s92, s92, %d" % DG)
L("L_p10j")
A("s_add_u32 s92, s92, s93")
STAMP()
NP = opt["fpipe"]
sets = [32 + 4 * k for k in range(NP)]
for k in range(NP):
    A("buffer_load_dwordx4 v[%d:%d], v8, %s, s92 offen sc1" % (sets[k], sets[k] + 3, srd(sWS)))
    if k + 1 < NP and opt["fsleep"]:
        A("s_sleep %d" % opt["fsleep"])
L("L_fretry")
for k in range(NP):
    r = sets[k]
    A("s_waitcnt vmcnt(%d)" % (NP - 1))
    A("v_xor_b32 v16, v%d, v%d" % (r + 1, vTAG))
    A("v_xor_b32 v17, v%d, v%d" % (r + 3, vTAG))
    A("v_or_b32 v16, v16, v17")
    A("v_mov_b32 v12, v%d" % r)
    A("v_mov_b32 v14, v%d" % (r + 2))
    A("v_cmp_ne_u32 vcc, 0, v16")
    A("s_cbranch_vccz L_fok")
    A("buffer_load_dwordx4 v[%d:%d], v8, %s, s92 offen sc1" % (r, r + 3, srd(sWS)))
A("s_add_u32 s%d, s%d, 1" % (sSPIN, sSPIN))
A("s_cmp_lt_u32 s%d, %d" % (sSPIN, opt["spin"] * 8))
A("s_cbranch_scc1 L_fretry")
L("L_fok")
A("s_nop 1")
A("v_add_f32_dpp v12, v12, v12 row_ror:8 row_mask:0xf bank_mask:0xf")
A("v_add_f32_dpp v14, v14, v14 row_ror:8 row_mask:0xf bank_mask:0xf")
crossrow(12, 16, "v_add_f32")
crossrow(14, 16, "v_add_f32")
A("v_mov_b32 v13, v14")
A("s_lshl_b32 s92, s%d, 6" % sRL)
A("s_add_u32 s92, s92, %d" % L_FIN)
A("v_lshlrev_b32 v9, 3, v9")
A("v_add_u32 v9, s92, v9")
A("ds_write_b64 v9, v[12:13]")
A("s_waitcnt lgkmcnt(0)")
L("L_fbar")
A("s_barrier")
STAMP()
A("s_cmp_lg_u32 s%d, 0" % sW)
A("s_cbranch_scc1 L_done")
A("v_lshlrev_b32 v9, 2, v%d" % vI)
A("v_add_u32 v9, %d, v9" % L_FIN)
for k in range(5):
    A("ds_read_b32 v%d, v9 offset:%d" % (12 + k, k * 64))
A("s_waitcnt lgkmcnt(0)")
A("v_add_f32 v12, v12, v13")
A("v_add_f32 v14, v14, v15")
A("v_add_f32 v12, v12, v14")
A("v_cvt_pk_bf16_f32 v12, v12, v16")
unpack(12, 13, 14)
A("v_mul_f32 v15, s%d, v14" % sLOG2E)
A("v_exp_f32 v15, -v15")
A("s_nop 0")
A("v_add_f32 v15, 1.0, v15")
A("v_rcp_f32 v16, v15")
A("s_nop 0")
A("v_mul_f32 v17, v14, v16")
A("v_fma_f32 v18, -v17, v15, v14")
A("v_fma_f32 v17, v18, v16, v17")
A("v_cvt_pk_bf16_f32 v17, v17, v17")
A("v_lshlrev_b32 v17, 16, v17")
A("v_mul_f32 v17, v13, v17")
A("v_cvt_pk_bf16_f32 v17, v17, v17")
A("v_lshlrev_b32 v17, 16, v17")
A("v_lshlrev_b32 v18, 16, v%d" % vXF)
A("v_add_f32 v17, v18, v17")
A("v_cvt_pk_bf16_f32 v17, v17, v17")
A("v_lshlrev_b32 v9, 1, v%d" % vI)
A("s_mov_b64 exec, 0xffff")
A("buffer_store_short v17, v9, %s, s%d offen" % (srd(sOUT), sT2))
A("s_cmp_lg_u32 s2, 0")
A("s_cbranch_scc1 L_done")
A("s_mov_b64 exec, 1")
A("buffer_store_dword v%d, v31, %s, 0 offen sc1" % (vTAG, srd(sWS)))
L("L_done")
if opt["stamps"]:
    A("s_mov_b64 exec, -1")
    A("v_writelane_b32 v128, s%d, 16" % sSPIN)
    if opt["dbg"]:
        A("s_memrealtime s[96:97]")
        A("s_waitcnt lgkmcnt(0)")
        A("v_writelane_b32 v128, s96, 14")
        A("v_readlane_b32 s96, v128, 0")
        A("s_not_b32 s96, s96")
        A("v_writelane_b32 v128, s96, 15")
        A("s_mov_b32 s4, s24")
        A("s_and_b32 s5, s25, 0xffff")
        A("s_mov_b32 s6, 256")
        A("s_mov_b32 s7, 0x00020000")
        A("v_lshlrev_b32 v9, 2, v%d" % vLANE)
        A("s_mov_b64 exec, 0xffff")
        A("buffer_atomic_umax v128, v9, s[4:7], 0 offen")
        A("s_endpgm")
    A("s_lshl_b32 s92, s2, 3")
    A("s_add_u32 s92, s92, s%d" % sW)
    A("s_lshl_b32 s92, s92, 7")
    A("s_add_u32 s92, s92, %d" % (4 << 20))
    A("v_lshlrev_b32 v9, 2, v%d" % vLANE)
    A("s_mov_b64 exec, 0xffffffff")
    A("buffer_store_dword v128, v9, %s, s92 offen" % srd(sWS))
L("L_end")
A("s_endpgm")
out.append('.section .rodata,"a"')
out.append(".p2align 6")
out.append(".amdhsa_kernel " + K)
out.append("  .amdhsa_next_free_vgpr %d" % (136 if opt["stamps"] else 128))
out.append("  .amdhsa_next_free_sgpr %d" % (100 if opt["stamps"] else 96))
out.append("  .amdhsa_accum_offset %d" % (136 if opt["stamps"] else 128))
out.append("  .amdhsa_group_segment_fixed_size 0")
out.append("  .amdhsa_kernarg_size 96")
out.append("  .amdhsa_user_sgpr_count 2")
out.append("  .amdhsa_user_sgpr_kernarg_segment_ptr 1")
out.append("  .amdhsa_system_sgpr_workgroup_id_x 1")
out.append(".end_amdhsa_kernel")
open(sys.argv[1], "w").write("\n".join(out) + "\n")
print("LDS", LDS_BYTES, "WS", WS_BYTES, "stamps", nstamp[0])
```

```python
import sys

NAME = "recurrent_scan__sliding_block_cached__glu_gated_bilinear__decode"
HEADER = open("cdna_kernels/%s.s.ref" % NAME).read().split("; @launch")[0]

opt = dict(
    kwait=4,
    nt=0,
    spin=1000000,
    sleep=0,
    stamps=0,
    ntw=0,
    exp=0,
    kearly=2,
    qpw=2,
    fpipe=3,
    fsleep=8,
    ldspad=0,
    rsh=0,
    dbg=0,
    perm=0,
    bar0=1,
)
for a in sys.argv[2:]:
    k, v = a.split("=")
    opt[k] = int(v)

GEN = 0
QG = 4096
HG = QG + 8 * 16384
OG = 262144
MLG = OG + 32 * 8 * 4 * 1024
SG = 1376256
DG = SG + 8 * 32 * 4096
WS_BYTES = DG + 8 * 8 * 4096
assert HG + 16 * 7168 <= OG and MLG + 32 * 8 * 4 * 16 <= SG

L_WQ = 0
L_OW = 0
L_WG = 16384
L_WU = 24576
L_WO = 32768
L_WD = 49152
L_XN = 57344
XS = 1088
L_Q = L_XN + 8 * XS
L_HT = L_Q + 1024
HS = 528
L_OT = L_HT + 8 * HS
OS = 272
L_ML = L_OT + 8 * OS
L_FIN = L_ML + 256
L_FLAG = L_FIN + 320
L_QP = L_XN + 8 * XS + 1024 + 8 * HS + 8 * OS + 256 + 320 + 64
L_GP = L_HT
assert L_QP == L_FLAG + 64
LDS_BYTES = L_QP + 4096
LDS_BYTES = (LDS_BYTES + 63) // 64 * 64
if opt["ldspad"]:
    LDS_BYTES = opt["ldspad"]

out = []
def A(s): out.append("    " + s)
def L(s): out.append(s + ":")
def C(s): out.append("    ; " + s)

sX, sK, sV, sWQ, sWO, sWG, sWU, sWD, sOUT, sWS = [28 + 4 * i for i in range(10)]
def srd(r): return "s[%d:%d]" % (r, r + 3)
sW, sx, sy = 68, 69, 70
sSELLO, sSELHI, sSPIN = 80, 81, 82
sSCALE, sLOG2E = 83, 86
sEX = 84
sKVOFF, sT0, sT1, sT2, sT3 = 71, 72, 73, 74, 75
sJ, sNS, sB, sCc = 76, 77, 78, 79
sWOoff, sWDoff, sW6 = 87, 88, 89
sMAT = 87
sRL = 88

vLANE, vI, vG, vTAG, vXF = 1, 2, 3, 4, 5
NT = " nt" if opt["nt"] else ""
NTW = " nt" if opt["ntw"] else ""

nstamp = [0]
def STAMP():
    if not opt["stamps"]:
        return
    A("s_memrealtime s[96:97]")
    A("s_waitcnt lgkmcnt(0)")
    A("v_writelane_b32 v128, s96, %d" % nstamp[0])
    nstamp[0] += 1

nlab = [0]
def waitv(base):
    n = nlab[0]; nlab[0] += 1
    A("s_cmp_gt_u32 s%d, 4" % sRL)
    A("s_cbranch_scc1 L_wv%d_a" % n)
    A("s_cmp_eq_u32 s%d, 4" % sRL)
    A("s_cbranch_scc1 L_wv%d_b" % n)
    A("s_waitcnt vmcnt(%d)" % (base + 4))
    A("s_branch L_wv%d_c" % n)
    L("L_wv%d_b" % n)
    A("s_waitcnt vmcnt(%d)" % (base + 7))
    A("s_branch L_wv%d_c" % n)
    L("L_wv%d_a" % n)
    A("s_waitcnt vmcnt(%d)" % base)
    L("L_wv%d_c" % n)

def allsum(x, t):
    for m in ("quad_perm:[1,0,3,2]", "quad_perm:[2,3,0,1]", "row_half_mirror", "row_mirror"):
        A("s_nop 1")
        A("v_add_f32_dpp v%d, v%d, v%d %s row_mask:0xf bank_mask:0xf" % (x, x, x, m))
    crossrow(x, t, "v_add_f32")

def crossrow(x, t, op):
    A("v_mov_b32 v%d, v%d" % (t, x))
    A("s_nop 1")
    A("v_permlane16_swap_b32 v%d, v%d" % (x, t))
    A("%s v%d, v%d, v%d" % (op, x, x, t))
    A("v_mov_b32 v%d, v%d" % (t, x))
    A("s_nop 1")
    A("v_permlane32_swap_b32 v%d, v%d" % (x, t))
    A("%s v%d, v%d, v%d" % (op, x, x, t))

def unpack(src, lo, hi):
    A("v_lshlrev_b32 v%d, 16, v%d" % (lo, src))
    A("v_and_b32 v%d, 0xffff0000, v%d" % (hi, src))

def tagcheck(tags, ta, tb, retry):
    assert len(tags) >= 2
    A("v_min_u32 v%d, v%d, v%d" % (ta, tags[0], tags[1]))
    A("v_max_u32 v%d, v%d, v%d" % (tb, tags[0], tags[1]))
    rest = tags[2:]
    while rest:
        if len(rest) >= 2:
            A("v_min3_u32 v%d, v%d, v%d, v%d" % (ta, ta, rest[0], rest[1]))
            A("v_max3_u32 v%d, v%d, v%d, v%d" % (tb, tb, rest[0], rest[1]))
            rest = rest[2:]
        else:
            A("v_min_u32 v%d, v%d, v%d" % (ta, ta, rest[0]))
            A("v_max_u32 v%d, v%d, v%d" % (tb, tb, rest[0]))
            rest = rest[1:]
    A("v_xor_b32 v%d, v%d, v%d" % (ta, ta, vTAG))
    A("v_xor_b32 v%d, v%d, v%d" % (tb, tb, vTAG))
    A("v_or_b32 v%d, v%d, v%d" % (ta, ta, tb))
    A("v_cmp_ne_u32 vcc, 0, v%d" % ta)
    A("s_cbranch_vccz %s_ok" % retry)
    A("s_add_u32 s%d, s%d, 1" % (sSPIN, sSPIN))
    A("s_cmp_lt_u32 s%d, %d" % (sSPIN, opt["spin"]))
    if opt["sleep"]:
        A("s_sleep %d" % opt["sleep"])
    A("s_cbranch_scc1 %s" % retry)
    L(retry + "_ok")

def gemv_tile(ks, abase, astep, ahalf, bbase, acc, bank0, bank1):
    if isinstance(ks, int):
        ks = list(range(ks))
    batches = [ks[s:s + 4] for s in range(0, len(ks), 4)]
    def issue(bi):
        for n, t in enumerate(batches[bi]):
            r = (bank1 if bi & 1 else bank0) + n * 8
            A("ds_read_b64_tr_b16 v[%d:%d], v%d offset:%d" % (r, r + 1, abase, t * astep))
            A("ds_read_b64_tr_b16 v[%d:%d], v%d offset:%d" % (r + 2, r + 3, abase, t * astep + ahalf))
            A("ds_read_b128 v[%d:%d], v%d offset:%d" % (r + 4, r + 7, bbase, t * 64))
    issue(0)
    first = True
    for bi in range(len(batches)):
        A("s_waitcnt lgkmcnt(0)")
        if bi + 1 < len(batches):
            issue(bi + 1)
        for n, t in enumerate(batches[bi]):
            r = (bank1 if bi & 1 else bank0) + n * 8
            c = "0" if first else "v[%d:%d]" % (acc, acc + 3)
            first = False
            A("v_mfma_f32_16x16x32_bf16 v[%d:%d], v[%d:%d], v[%d:%d], %s" % (acc, acc + 3, r, r + 3, r + 4, r + 7, c))
    A("s_nop 7")
    A("s_nop 1")

K = NAME + "_kernel"
out.append(HEADER.rstrip("\n"))
out.append("; @launch grid=(256,1,1) block=(512,1,1) lds=%d" % LDS_BYTES)
out.append('.amdgcn_target "amdgcn-amd-amdhsa--gfx950"')
out.append(".text")
out.append(".globl " + K)
out.append(".p2align 8")
out.append(".type %s,@function" % K)
L(K)
A("s_cmp_ge_u32 s2, 256")
A("s_cbranch_scc1 L_end")
if opt["stamps"]:
    A("v_mov_b32 v128, 0")
STAMP()
A("s_load_dwordx16 s[4:19], s[0:1], 0")
A("s_load_dwordx8 s[20:27], s[0:1], 64")
A("v_lshrrev_b32 v6, 6, v0")
A("v_and_b32 v%d, 63, v0" % vLANE)
A("v_and_b32 v%d, 15, v0" % vI)
A("v_bfe_u32 v%d, v0, 4, 2" % vG)
A("v_readfirstlane_b32 s%d, v6" % sW)
A("s_add_u32 s%d, s%d, %d" % (sRL, sW, opt["rsh"]))
A("s_and_b32 s%d, s%d, 7" % (sRL, sRL))
A("s_and_b32 s%d, s2, 7" % sx)
A("s_lshr_b32 s%d, s2, 3" % sy)
A("s_mov_b32 s%d, 0x05040100" % sSELLO)
A("s_mov_b32 s%d, 0x07060302" % sSELHI)
A("s_mov_b32 s%d, 0" % sSPIN)
A("s_mov_b32 s%d, 0x3db504f3" % sSCALE)
A("s_mov_b32 s%d, 0x3fb8aa3b" % sLOG2E)
C("attention role: hkv=sx, b=sy>>2, c=sy&3")
A("s_xor_b32 s%d, s%d, %d" % (sT0, sy, opt["perm"]))
A("s_lshr_b32 s%d, s%d, 2" % (sB, sT0))
A("s_and_b32 s%d, s%d, 3" % (sCc, sT0))
A("s_lshl_b32 s%d, s%d, 23" % (sKVOFF, sB))
A("s_lshl_b32 s%d, s%d, 20" % (sT0, sx))
A("s_add_u32 s%d, s%d, s%d" % (sKVOFF, sKVOFF, sT0))
A("s_lshl_b32 s%d, s%d, 16" % (sT0, sCc))
A("s_add_u32 s%d, s%d, s%d" % (sKVOFF, sKVOFF, sT0))
A("s_lshl_b32 s%d, s%d, 13" % (sT0, sW))
A("s_add_u32 s%d, s%d, s%d" % (sKVOFF, sKVOFF, sT0))
A("s_add_u32 s%d, s%d, %d" % (sKVOFF, sKVOFF, 3072 * 256))
C("o-proj role: j = sx*4 + (sy>>3), ns = sy&7")
A("s_lshl_b32 s%d, s%d, 2" % (sJ, sx))
A("s_lshr_b32 s%d, s%d, 3" % (sT0, sy))
A("s_add_u32 s%d, s%d, s%d" % (sJ, sJ, sT0))
A("s_and_b32 s%d, s%d, 7" % (sNS, sy))
C("per-lane offsets")
A("v_lshlrev_b32 v6, 4, v%d" % vLANE)
A("v_lshrrev_b32 v7, 1, v%d" % vLANE)
A("v_and_b32 v8, 1, v%d" % vLANE)
A("v_lshlrev_b32 v8, 4, v8")
A("v_lshl_add_u32 v9, v7, 13, v8")
A("v_lshl_add_u32 v28, v7, 10, v8")
A("v_mul_u32_u24 v10, 3584, v7")
A("v_add_u32 v10, v10, v8")
A("v_lshrrev_b32 v7, 3, v%d" % vLANE)
A("v_and_b32 v8, 7, v%d" % vLANE)
A("v_lshlrev_b32 v8, 4, v8")
A("v_mov_b32 v29, %d" % L_FLAG)
C("K voff = (8*(i>>2) + (i&3))*256 + g*16")
A("v_lshrrev_b32 v7, 2, v%d" % vI)
A("v_and_b32 v8, 3, v%d" % vI)
A("v_lshl_add_u32 v7, v7, 3, v8")
A("v_lshlrev_b32 v7, 8, v7")
A("v_lshl_add_u32 v11, v%d, 4, v7" % vG)
C("V voff = 8g*256 + i*16")
A("v_lshlrev_b32 v7, 11, v%d" % vG)
A("v_lshl_add_u32 v30, v%d, 4, v7" % vI)
A("v_mov_b32 v31, 0")
C("x for final: x[b_f=sx][16*sy + (l&15)]")
A("v_lshlrev_b32 v12, 1, v%d" % vI)
A("s_lshl_b32 s%d, s%d, 10" % (sT2, sx))
A("s_lshl_b32 s%d, s%d, 5" % (sT0, sy))
A("s_add_u32 s%d, s%d, s%d" % (sT2, sT2, sT0))
C("wq soffset = cb*32 + 2*wave*262144 ; cb = sx*32+sy")
A("s_lshl_b32 s%d, s%d, 5" % (sT0, sx))
A("s_add_u32 s%d, s%d, s%d" % (sT0, sT0, sy))
A("s_lshl_b32 s%d, s%d, 5" % (sT0, sT0))
A("s_lshl_b32 s%d, s%d, 19" % (sT1, sW))
A("s_add_u32 s%d, s%d, s%d" % (sT0, sT0, sT1))
C("gu tile: syc=min(sy,27); mat = syc>=14; ti = syc-14*mat; soff = 448*sx + 32*ti + 2*wave*32*3584")
A("s_min_u32 s%d, s%d, 27" % (sT3, sy))
A("s_cmp_ge_u32 s%d, 14" % sT3)
A("s_cselect_b32 s%d, 1, 0" % sMAT)
A("s_mul_i32 s%d, s%d, 14" % (sT1, sMAT))
A("s_sub_u32 s90, s%d, s%d" % (sT3, sT1))
A("s_lshl_b32 s%d, s90, 5" % sT3)
A("s_mul_i32 s%d, s%d, 448" % (sT1, sx))
A("s_add_u32 s%d, s%d, s%d" % (sT3, sT3, sT1))
A("s_mul_i32 s%d, s%d, %d" % (sT1, sW, 64 * 3584))
A("s_add_u32 s%d, s%d, s%d" % (sT3, sT3, sT1))
A("s_lshl_b32 s91, s%d, 10" % sW)
A("s_waitcnt lgkmcnt(0)")
def mksrd(r, p, nbytes):
    A("s_mov_b32 s%d, s%d" % (r, p))
    A("s_and_b32 s%d, s%d, 0xffff" % (r + 1, p + 1))
    A("s_mov_b32 s%d, %d" % (r + 2, nbytes))
    A("s_mov_b32 s%d, 0x00020000" % (r + 3))
mksrd(sWS, 26, (8 << 20) if opt["stamps"] else WS_BYTES)
mksrd(sX, 4, 8192)
mksrd(sWQ, 10, 512 * 4096 * 2)
STAMP()
C("first loads")
A("s_load_dword s95, s[26:27], 0")
A("buffer_load_ushort v%d, v12, %s, s%d offen" % (vXF, srd(sX), sT2))
A("buffer_load_dwordx4 v[20:23], v6, %s, s91 offen" % srd(sX))
A("s_lshl_b32 s92, s91, 1")
A("s_add_u32 s92, s92, %d" % L_WQ)
A("s_mov_b32 m0, s92")
A("s_add_u32 s93, s%d, 262144" % sT0)
A("buffer_load_dwordx4 v9, %s, s%d offen%s lds" % (srd(sWQ), sT0, NTW))
A("s_add_u32 s92, s92, 1024")
A("s_mov_b32 m0, s92")
mksrd(sK, 6, 64 << 20)
A("buffer_load_dwordx4 v9, %s, s93 offen%s lds" % (srd(sWQ), NTW))
A("s_cmp_eq_u32 s%d, 0" % sMAT)
A("s_cselect_b32 s16, s16, s18")
A("s_cselect_b32 s17, s17, s19")
mksrd(sWG, 16, 512 * 1792 * 2)
A("s_lshl_b32 s92, s91, 1")
A("s_add_u32 s92, s92, %d" % L_WG)
A("s_mov_b32 m0, s92")
A("s_add_u32 s93, s%d, %d" % (sT3, 32 * 3584))
A("buffer_load_dwordx4 v10, %s, s%d offen%s lds" % (srd(sWG), sT3, NTW))
A("s_add_u32 s92, s92, 1024")
A("s_mov_b32 m0, s92")
A("s_nop 0")
A("buffer_load_dwordx4 v10, %s, s93 offen%s lds" % (srd(sWG), NTW))
if opt["bar0"]:
    A("s_barrier")
KE = opt["kearly"]
def kloads(lo, hi):
    for n in range(lo, hi):
        T, t = n >> 2, n & 3
        r = 32 + n * 4
        A("buffer_load_dwordx4 v[%d:%d], v11, %s, s%d offen offset:%d%s" % (r, r + 3, srd(sK), sKVOFF, T * 1024 + t * 64, NT))
kloads(0, KE)
mksrd(sV, 8, 64 << 20)
mksrd(sWO, 12, 4096 * 512 * 2)
mksrd(sWD, 20, 1792 * 512 * 2)
mksrd(sOUT, 22, 8192)

C("P1 layernorm")
A("s_waitcnt vmcnt(%d)" % (4 + KE))
STAMP()
A("s_waitcnt lgkmcnt(0)")
A("s_add_u32 s95, s95, 1")
A("v_mov_b32 v%d, s95" % vTAG)
for k in range(4):
    unpack(20 + k, 12 + 2 * k, 13 + 2 * k)
A("v_add_f32 v20, v12, v13")
A("v_add_f32 v21, v14, v15")
A("v_add_f32 v22, v16, v17")
A("v_add_f32 v23, v18, v19")
A("v_add_f32 v20, v20, v21")
A("v_add_f32 v22, v22, v23")
A("v_add_f32 v20, v20, v22")
allsum(20, 21)
A("v_mul_f32 v20, 0x3b000000, v20")
A("v_sub_f32 v21, v12, v20")
A("v_mul_f32 v22, v21, v21")
for k in range(1, 8):
    A("v_sub_f32 v21, v%d, v20" % (12 + k))
    A("v_fmac_f32 v22, v21, v21")
allsum(22, 21)
A("v_mul_f32 v22, 0x3b000000, v22")
A("v_cvt_pk_bf16_f32 v20, v20, v22")
A("v_and_b32 v22, 0xffff0000, v20")
A("v_lshlrev_b32 v20, 16, v20")
A("v_add_f32 v22, 0x3727c5ac, v22")
A("v_cvt_pk_bf16_f32 v22, v22, v22")
A("v_lshlrev_b32 v22, 16, v22")
A("v_sqrt_f32 v22, v22")
A("s_nop 0")
A("v_cvt_pk_bf16_f32 v22, v22, v22")
A("v_lshlrev_b32 v22, 16, v22")
A("v_rcp_f32 v23, v22")
for k in range(4):
    a, b = 12 + 2 * k, 13 + 2 * k
    A("v_sub_f32 v%d, v%d, v20" % (a, a))
    A("v_sub_f32 v%d, v%d, v20" % (b, b))
    A("v_cvt_pk_bf16_f32 v21, v%d, v%d" % (a, b))
    unpack(21, a, b)
    for e in (a, b):
        A("v_mul_f32 v21, v%d, v23" % e)
        A("v_fma_f32 v24, -v21, v22, v%d" % e)
        A("v_fma_f32 v%d, v24, v23, v21" % e)
    A("v_cvt_pk_bf16_f32 v%d, v%d, v%d" % (96 + k, a, b))
A("s_mul_i32 s92, s%d, %d" % (sW, XS))
A("s_add_u32 s92, s92, %d" % L_XN)
A("v_add_u32 v7, s92, v6")
A("ds_write_b128 v7, v[96:99]")
A("ds_write_b32 v29, v31")
A("s_waitcnt vmcnt(%d) lgkmcnt(0)" % KE)
STAMP()
A("s_barrier")
STAMP()

C("P2")
A("v_and_b32 v7, 7, v%d" % vI)
A("v_mul_u32_u24 v7, %d, v7" % XS)
A("v_lshl_add_u32 v7, v%d, 4, v7" % vG)
A("v_add_u32 v7, %d, v7" % L_XN)
A("s_lshl_b32 s92, s%d, 7" % sW)
A("v_add_u32 v16, s92, v7")
A("v_lshlrev_b32 v8, 8, v%d" % vG)
A("v_lshl_add_u32 v8, v%d, 3, v8" % vI)
A("s_lshl_b32 s92, s%d, 11" % sW)
A("s_add_u32 s92, s92, %d" % L_WQ)
A("v_add_u32 v8, s92, v8")
A("v_add_u32 v9, %d, v8" % (L_WG - L_WQ))
for n in range(2):
    A("ds_read_b64_tr_b16 v[%d:%d], v8 offset:%d" % (64 + 4 * n, 65 + 4 * n, n * 1024))
    A("ds_read_b64_tr_b16 v[%d:%d], v8 offset:%d" % (66 + 4 * n, 67 + 4 * n, n * 1024 + 128))
    A("ds_read_b128 v[%d:%d], v16 offset:%d" % (80 + 4 * n, 83 + 4 * n, n * 64))
for n in range(2):
    A("ds_read_b64_tr_b16 v[%d:%d], v9 offset:%d" % (72 + 4 * n, 73 + 4 * n, n * 1024))
    A("ds_read_b64_tr_b16 v[%d:%d], v9 offset:%d" % (74 + 4 * n, 75 + 4 * n, n * 1024 + 128))
A("s_waitcnt lgkmcnt(4)")
A("v_mfma_f32_16x16x32_bf16 v[12:15], v[64:67], v[80:83], 0")
A("v_mfma_f32_16x16x32_bf16 v[12:15], v[68:71], v[84:87], v[12:15]")
A("s_waitcnt lgkmcnt(0)")
A("v_mfma_f32_16x16x32_bf16 v[16:19], v[72:75], v[80:83], 0")
A("v_mfma_f32_16x16x32_bf16 v[16:19], v[76:79], v[84:87], v[16:19]")
C("partials -> L_QP/L_GP + wave*512 + (g*8 + i)*16 for i<8")
A("v_lshl_add_u32 v8, v%d, 3, v%d" % (vG, vI))
A("v_lshlrev_b32 v8, 4, v8")
A("v_add_u32 v8, %d, v8" % L_QP)
A("s_lshl_b32 s92, s%d, 9" % sW)
A("v_add_u32 v9, s92, v8")
A("v_cmp_gt_u32 vcc, 8, v%d" % vI)
A("s_and_saveexec_b64 s[%d:%d], vcc" % (sEX, sEX + 1))
A("s_nop 7")
A("ds_write_b128 v9, v[12:15]")
A("v_subrev_u32 v9, %d, v9" % (L_QP - L_GP))
A("ds_write_b128 v9, v[16:19]")
A("s_mov_b64 exec, s[%d:%d]" % (sEX, sEX + 1))
A("s_waitcnt lgkmcnt(0)")
A("s_barrier")
A("s_cmp_gt_u32 s%d, 1" % sW)
A("s_cbranch_scc1 L_p3")
C("wave 0 reduces q, wave 1 reduces gate/up")
A("s_mul_i32 s92, s%d, %d" % (sW, L_QP - L_GP))
A("v_subrev_u32 v8, s92, v8")
A("v_cmp_gt_u32 vcc, 8, v%d" % vI)
A("s_and_saveexec_b64 s[%d:%d], vcc" % (sEX, sEX + 1))
for v in range(8):
    A("ds_read_b128 v[%d:%d], v8 offset:%d" % (64 + 4 * v, 67 + 4 * v, v * 512))
A("s_cmp_eq_u32 s%d, 1" % sW)
A("s_cbranch_scc1 L_p2g")
C("q: addr = QG + b*16384 + cb*64 + g*16")
A("v_lshlrev_b32 v8, 14, v%d" % vI)
A("s_lshl_b32 s92, s%d, 5" % sx)
A("s_add_u32 s92, s92, s%d" % sy)
A("s_lshl_b32 s92, s92, 6")
A("s_add_u32 s92, s92, %d" % QG)
A("s_branch L_p2j")
L("L_p2g")
C("gu: addr = HG + (mat*8 + b)*7168 + sx*896 + ti*64 + g*16 ; skip if sy>=28")
A("v_mul_u32_u24 v8, 7168, v%d" % vI)
A("s_mul_i32 s92, s%d, %d" % (sMAT, 8 * 7168))
A("s_mul_i32 s93, s%d, 896" % sx)
A("s_add_u32 s92, s92, s93")
A("s_lshl_b32 s93, s90, 6")
A("s_add_u32 s92, s92, s93")
A("s_add_u32 s92, s92, %d" % HG)
A("s_cmp_lt_u32 s%d, 28" % sy)
A("s_cbranch_scc1 L_p2j")
A("s_waitcnt lgkmcnt(0)")
A("s_mov_b64 exec, s[%d:%d]" % (sEX, sEX + 1))
A("s_branch L_p3")
L("L_p2j")
A("v_lshl_add_u32 v8, v%d, 4, v8" % vG)
A("s_waitcnt lgkmcnt(0)")
for v in range(1, 8):
    for r in range(4):
        A("v_add_f32 v%d, v%d, v%d" % (64 + r, 64 + r, 64 + 4 * v + r))
A("v_cvt_pk_bf16_f32 v16, v64, v65")
A("v_cvt_pk_bf16_f32 v18, v66, v67")
A("v_mov_b32 v17, v%d" % vTAG)
A("v_mov_b32 v19, v%d" % vTAG)
A("buffer_store_dwordx4 v[16:19], v8, %s, s92 offen sc1" % srd(sWS))
A("s_mov_b64 exec, s[%d:%d]" % (sEX, sEX + 1))

L("L_p3")
STAMP()
kloads(KE, 8)
for e in range(8):
    r = 64 + e * 4
    A("buffer_load_dwordx4 v[%d:%d], v30, %s, s%d offen offset:%d%s" % (r, r + 3, srd(sV), sKVOFF, e * 256, NT))
A("s_cmp_gt_u32 s%d, 4" % sRL)
A("s_cbranch_scc1 L_p3x")
A("s_cmp_eq_u32 s%d, 4" % sRL)
A("s_cbranch_scc1 L_p3d")
C("wo column tile: soff = (128j + 32q)*1024 + ns*128 + wave*32 ; LDS L_WO + wave*4096 + q*1024")
A("s_lshl_b32 s92, s%d, 17" % sJ)
A("s_lshl_b32 s93, s%d, 7" % sNS)
A("s_add_u32 s92, s92, s93")
A("s_lshl_b32 s93, s%d, 5" % sRL)
A("s_add_u32 s92, s92, s93")
A("s_lshl_b32 s93, s%d, 12" % sRL)
A("s_add_u32 s93, s93, %d" % L_WO)
for q in range(4):
    A("s_mov_b32 m0, s93")
    A("s_add_u32 s93, s93, 1024")
    A("buffer_load_dwordx4 v28, %s, s92 offen%s lds" % (srd(sWO), NTW))
    A("s_add_u32 s92, s92, 32768")
A("s_branch L_p3x")
L("L_p3d")
C("wd tile: soff = (224kg + 32q)*1024 + ct*32")
A("s_mul_i32 s92, s%d, %d" % (sx, 224 * 1024))
A("s_lshl_b32 s93, s%d, 5" % sy)
A("s_add_u32 s92, s92, s93")
A("s_mov_b32 s93, %d" % L_WD)
for q in range(7):
    A("s_mov_b32 m0, s93")
    A("s_add_u32 s93, s93, 1024")
    A("buffer_load_dwordx4 v28, %s, s92 offen%s lds" % (srd(sWD), NTW))
    A("s_add_u32 s92, s92, 32768")
L("L_p3x")
STAMP()
A("s_cmp_lg_u32 s%d, %d" % (sW, opt["qpw"]))
A("s_cbranch_scc1 L_qf")
C("q poll addr = QG + b*16384 + hkv*2048 + l*32")
A("s_lshl_b32 s92, s%d, 14" % sB)
A("s_lshl_b32 s93, s%d, 11" % sx)
A("s_add_u32 s92, s92, s93")
A("s_add_u32 s92, s92, %d" % QG)
A("v_lshlrev_b32 v8, 5, v%d" % vLANE)
L("L_qretry")
A("buffer_load_dwordx4 v[12:15], v8, %s, s92 offen sc1" % srd(sWS))
A("buffer_load_dwordx4 v[16:19], v8, %s, s92 offen offset:16 sc1" % srd(sWS))
A("s_waitcnt vmcnt(0)")
tagcheck([13, 15, 17, 19], 20, 21, "L_qretry")
A("v_mov_b32 v20, v12")
A("v_mov_b32 v21, v14")
A("v_mov_b32 v22, v16")
A("v_mov_b32 v23, v18")
A("v_mov_b32 v9, 1")
A("v_add_u32 v8, %d, v6" % L_Q)
A("ds_write_b128 v8, v[20:23]")
A("s_waitcnt lgkmcnt(0)")
A("ds_write_b32 v29, v9")
C("wait for q flag in LDS")
L("L_qf")
A("ds_read_b32 v12, v29")
A("s_waitcnt lgkmcnt(0)")
A("v_readfirstlane_b32 s92, v12")
A("s_add_u32 s%d, s%d, 1" % (sSPIN, sSPIN))
A("s_cmp_eq_u32 s92, 1")
A("s_cbranch_scc1 L_qf_ok")
A("s_cmp_lt_u32 s%d, %d" % (sSPIN, opt["spin"] * 16))
A("s_cbranch_scc1 L_qf")
L("L_qf_ok")
A("s_mov_b32 s%d, 0" % sSPIN)
STAMP()

C("P5")
A("v_and_b32 v9, 3, v%d" % vI)
A("v_lshlrev_b32 v9, 8, v9")
A("v_lshl_add_u32 v9, v%d, 4, v9" % vG)
A("v_add_u32 v9, %d, v9" % L_Q)
for t in range(4):
    A("ds_read_b128 v[%d:%d], v9 offset:%d" % (96 + 4 * t, 99 + 4 * t, t * 64))
waitv(8)
A("s_waitcnt lgkmcnt(0)")
for T in range(2):
    for t in range(4):
        r = 32 + (T * 4 + t) * 4
        acc = 112 + 4 * T
        c = "0" if t == 0 else "v[%d:%d]" % (acc, acc + 3)
        A("v_mfma_f32_16x16x32_bf16 v[%d:%d], v[%d:%d], v[%d:%d], %s" % (acc, acc + 3, r, r + 3, 96 + 4 * t, 99 + 4 * t, c))
A("s_nop 7")
A("s_nop 1")
for k in range(4):
    A("v_cvt_pk_bf16_f32 v%d, v%d, v%d" % (20 + k, 112 + 2 * k, 113 + 2 * k))
for k in range(4):
    unpack(20 + k, 12 + 2 * k, 13 + 2 * k)
for k in range(8):
    A("v_mul_f32 v%d, s%d, v%d" % (12 + k, sSCALE, 12 + k))
for k in range(4):
    A("v_cvt_pk_bf16_f32 v%d, v%d, v%d" % (20 + k, 12 + 2 * k, 13 + 2 * k))
for k in range(4):
    unpack(20 + k, 12 + 2 * k, 13 + 2 * k)
A("v_max3_f32 v20, v12, v13, v14")
A("v_max3_f32 v20, v20, v15, v16")
A("v_max3_f32 v20, v20, v17, v18")
A("v_max_f32 v20, v20, v19")
crossrow(20, 21, "v_max_f32")
for k in range(8):
    A("v_sub_f32 v%d, v%d, v20" % (12 + k, 12 + k))
for k in range(8):
    A("v_mul_f32 v%d, s%d, v%d" % (12 + k, sLOG2E, 12 + k))
for k in range(8):
    A("v_exp_f32 v%d, v%d" % (12 + k, 12 + k))
A("s_nop 0")
A("v_add_f32 v22, v12, v13")
A("v_add_f32 v23, v14, v15")
A("v_add_f32 v22, v22, v16")
A("v_add_f32 v23, v23, v17")
A("v_add_f32 v22, v22, v18")
A("v_add_f32 v23, v23, v19")
A("v_add_f32 v22, v22, v23")
crossrow(22, 21, "v_add_f32")
for k in range(4):
    A("v_cvt_pk_bf16_f32 v%d, v%d, v%d" % (24 + k, 12 + 2 * k, 13 + 2 * k))

C("P6")
C("LDS addr for partial O: L_OW + wave*2048 + i*512 + g*128 (+j*16)")
A("s_lshl_b32 s92, s%d, 11" % sW)
A("s_add_u32 s92, s92, %d" % L_OW)
A("v_lshlrev_b32 v9, 9, v%d" % vI)
A("v_lshl_add_u32 v9, v%d, 7, v9" % vG)
A("v_add_u32 v9, s92, v9")
A("s_lshl_b32 s92, s%d, 2" % sW)
A("s_add_u32 s92, s92, %d" % L_ML)
A("v_lshlrev_b32 v10, 5, v%d" % vI)
A("v_add_u32 v10, s92, v10")
STAMP()
waitv(0)
STAMP()
for j in range(8):
    w = j >> 1
    sel = sSELHI if (j & 1) else sSELLO
    for u in range(4):
        A("v_perm_b32 v%d, v%d, v%d, s%d" % (32 + 4 * j + u, 64 + 4 * (2 * u + 1) + w, 64 + 4 * (2 * u) + w, sel))
A("s_nop 1")
for j in range(8):
    A("v_mfma_f32_16x16x32_bf16 v[%d:%d], v[%d:%d], v[24:27], 0" % (64 + 4 * j, 67 + 4 * j, 32 + 4 * j, 35 + 4 * j))
A("v_cmp_gt_u32 vcc, 4, v%d" % vI)
A("s_and_saveexec_b64 s[%d:%d], vcc" % (sEX, sEX + 1))
A("ds_write_b32 v10, v20")
A("ds_write_b32 v10, v22 offset:128")
A("s_nop 7")
for j in range(8):
    A("ds_write_b128 v9, v[%d:%d] offset:%d" % (64 + 4 * j, 67 + 4 * j, j * 16))
A("s_mov_b64 exec, s[%d:%d]" % (sEX, sEX + 1))
A("s_waitcnt lgkmcnt(0)")
A("s_barrier")

C("P7")
A("s_cmp_ge_u32 s%d, 4" % sW)
A("s_cbranch_scc1 L_p8")
C("addr = L_OW + h*512 + (l>>4)*128 + (l&3)*32 + ((l>>2)&3)*4")
A("s_lshl_b32 s92, s%d, 9" % sW)
A("s_add_u32 s92, s92, %d" % L_OW)
A("v_lshlrev_b32 v9, 7, v%d" % vG)
A("v_and_b32 v10, 3, v%d" % vLANE)
A("v_lshl_add_u32 v9, v10, 5, v9")
A("v_bfe_u32 v10, v%d, 2, 2" % vLANE)
A("v_lshl_add_u32 v9, v10, 2, v9")
A("v_add_u32 v9, s92, v9")
A("s_lshl_b32 s92, s%d, 5" % sW)
A("s_add_u32 s92, s92, %d" % L_ML)
A("v_mov_b32 v10, s92")
A("ds_read_b128 v[32:35], v10")
A("ds_read_b128 v[36:39], v10 offset:16")
A("ds_read_b128 v[40:43], v10 offset:128")
A("ds_read_b128 v[44:47], v10 offset:144")
for v in range(5):
    A("ds_read_b32 v%d, v9 offset:%d" % (48 + 2 * v, v * 2048))
    A("ds_read_b32 v%d, v9 offset:%d" % (49 + 2 * v, v * 2048 + 16))
A("s_waitcnt lgkmcnt(10)")
for v in range(5, 8):
    pass
A("v_max3_f32 v12, v32, v33, v34")
A("v_max3_f32 v12, v12, v35, v36")
A("v_max3_f32 v12, v12, v37, v38")
A("v_max_f32 v12, v12, v39")
for v in range(8):
    A("v_sub_f32 v%d, v%d, v12" % (32 + v, 32 + v))
for v in range(8):
    A("v_mul_f32 v%d, s%d, v%d" % (32 + v, sLOG2E, 32 + v))
for v in range(8):
    A("v_exp_f32 v%d, v%d" % (32 + v, 32 + v))
A("s_waitcnt lgkmcnt(4)")
for v in range(5, 8):
    A("ds_read_b32 v%d, v9 offset:%d" % (48 + 2 * v, v * 2048))
    A("ds_read_b32 v%d, v9 offset:%d" % (49 + 2 * v, v * 2048 + 16))
A("v_mul_f32 v14, v32, v40")
for v in range(1, 8):
    A("v_fmac_f32 v14, v%d, v%d" % (32 + v, 40 + v))
A("s_waitcnt lgkmcnt(0)")
A("v_mul_f32 v16, v32, v48")
A("v_mul_f32 v18, v32, v49")
for v in range(1, 8):
    A("v_fmac_f32 v16, v%d, v%d" % (32 + v, 48 + 2 * v))
    A("v_fmac_f32 v18, v%d, v%d" % (32 + v, 49 + 2 * v))
A("v_mov_b32 v13, v%d" % vTAG)
A("v_mov_b32 v15, v%d" % vTAG)
A("v_mov_b32 v17, v%d" % vTAG)
A("v_mov_b32 v19, v%d" % vTAG)
C("slot = ((hkv*4+wave)*8 + b)*4 + c")
A("s_lshl_b32 s92, s%d, 2" % sx)
A("s_add_u32 s92, s92, s%d" % sW)
A("s_lshl_b32 s92, s92, 3")
A("s_add_u32 s92, s92, s%d" % sB)
A("s_lshl_b32 s92, s92, 2")
A("s_add_u32 s92, s92, s%d" % sCc)
A("s_lshl_b32 s93, s92, 10")
A("s_add_u32 s93, s93, %d" % OG)
A("s_lshl_b32 s92, s92, 4")
A("s_add_u32 s92, s92, %d" % MLG)
A("buffer_store_dwordx4 v[16:19], v6, %s, s93 offen sc1" % srd(sWS))
A("s_mov_b64 exec, 1")
A("buffer_store_dwordx4 v[12:15], v31, %s, s92 offen sc1" % srd(sWS))
A("s_mov_b64 exec, -1")

L("L_p8")
STAMP()
C("slot base = (j*8 + wave)*4")
A("s_lshl_b32 s92, s%d, 3" % sJ)
A("s_add_u32 s92, s92, s%d" % sW)
A("s_lshl_b32 s93, s92, 12")
A("s_add_u32 s93, s93, %d" % OG)
A("s_lshl_b32 s92, s92, 6")
A("s_add_u32 s92, s92, %d" % MLG)
A("s_mul_i32 s94, s%d, 7168" % sW)
A("s_mul_i32 s95, s%d, 896" % sx)
A("s_add_u32 s94, s94, s95")
A("s_add_u32 s94, s94, %d" % HG)
A("v_min_u32 v9, 55, v%d" % vLANE)
A("v_lshlrev_b32 v10, 4, v9")
A("v_add_u32 v11, %d, v10" % (8 * 7168))
def oload(c):
    A("buffer_load_dwordx4 v[%d:%d], v6, %s, s93 offen offset:%d sc1" % (32 + 4 * c, 35 + 4 * c, srd(sWS), c * 1024))
def hload():
    A("buffer_load_dwordx4 v[64:67], v10, %s, s94 offen sc1" % srd(sWS))
    A("buffer_load_dwordx4 v[68:71], v11, %s, s94 offen sc1" % srd(sWS))
A("v_and_b32 v18, 3, v%d" % vLANE)
A("v_lshlrev_b32 v18, 4, v18")
hload()
A("buffer_load_dwordx4 v[48:51], v18, %s, s92 offen sc1" % srd(sWS))
C("A-fragment preload for P9 (own tile)")
A("s_mov_b32 s95, 0")
A("s_cmp_gt_u32 s%d, 4" % sRL)
A("s_cbranch_scc1 L_mchk")
A("v_lshlrev_b32 v8, 8, v%d" % vG)
A("v_lshl_add_u32 v8, v%d, 3, v8" % vI)
A("s_lshl_b32 s90, s%d, 12" % sRL)
A("s_add_u32 s90, s90, %d" % L_WO)
assert L_WO + 4 * 4096 == L_WD
A("v_add_u32 v8, s90, v8")
A("s_waitcnt vmcnt(3)")
for t in range(7):
    A("ds_read_b64_tr_b16 v[%d:%d], v8 offset:%d" % (96 + 4 * t, 97 + 4 * t, t * 1024))
    A("ds_read_b64_tr_b16 v[%d:%d], v8 offset:%d" % (98 + 4 * t, 99 + 4 * t, t * 1024 + 128))
L("L_mchk")
A("s_waitcnt vmcnt(0) lgkmcnt(0)")
A("v_xor_b32 v12, v49, v%d" % vTAG)
A("v_xor_b32 v13, v51, v%d" % vTAG)
A("v_or_b32 v12, v12, v13")
A("v_cmp_eq_u32 vcc, 0, v12")
A("s_and_b32 s90, vcc_lo, 15")
A("s_andn2_b32 s90, s90, s95")
A("s_or_b32 s95, s95, s90")
for c in range(4):
    A("s_bitcmp0_b32 s90, %d" % c)
    A("s_cbranch_scc1 L_msk%d" % c)
    oload(c)
    L("L_msk%d" % c)
A("s_cmp_eq_u32 s95, 15")
A("s_cbranch_scc1 L_ochk")
A("s_add_u32 s%d, s%d, 1" % (sSPIN, sSPIN))
A("s_cmp_ge_u32 s%d, %d" % (sSPIN, opt["spin"]))
A("s_cbranch_scc1 L_ochk")
A("buffer_load_dwordx4 v[48:51], v18, %s, s92 offen sc1" % srd(sWS))
A("s_branch L_mchk")
L("L_ochk")
A("s_waitcnt vmcnt(0)")
tg = [33, 35, 37, 39, 41, 43, 45, 47, 65, 67, 69, 71]
A("v_xor_b32 v12, v%d, v%d" % (tg[0], vTAG))
for t in tg[1:]:
    A("v_xor_b32 v13, v%d, v%d" % (t, vTAG))
    A("v_or_b32 v12, v12, v13")
A("v_cmp_ne_u32 vcc, 0, v12")
A("s_cbranch_vccz L_ook")
A("s_add_u32 s%d, s%d, 1" % (sSPIN, sSPIN))
A("s_cmp_ge_u32 s%d, %d" % (sSPIN, opt["spin"]))
A("s_cbranch_scc1 L_ook")
for c in range(4):
    oload(c)
hload()
A("s_branch L_ochk")
L("L_ook")
STAMP()
C("broadcast M_c, L_c from lanes 0..3")
for c in range(4):
    A("v_readlane_b32 s%d, v48, %d" % (8 + c, c))
    A("v_readlane_b32 s%d, v50, %d" % (12 + c, c))
A("s_nop 1")
for c in range(4):
    A("v_mov_b32 v%d, s%d" % (48 + 4 * c, 8 + c))
    A("v_mov_b32 v%d, s%d" % (50 + 4 * c, 12 + c))
A("v_max3_f32 v12, v48, v52, v56")
A("v_max_f32 v12, v12, v60")
for c in range(4):
    A("v_sub_f32 v%d, v%d, v12" % (48 + 4 * c, 48 + 4 * c))
for c in range(4):
    A("v_mul_f32 v%d, s%d, v%d" % (48 + 4 * c, sLOG2E, 48 + 4 * c))
for c in range(4):
    A("v_exp_f32 v%d, v%d" % (48 + 4 * c, 48 + 4 * c))
unpack(64, 72, 73)
unpack(66, 74, 75)
unpack(68, 76, 77)
unpack(70, 78, 79)
for r in range(4):
    A("v_mul_f32 v%d, v%d, v%d" % (72 + r, 72 + r, 76 + r))
A("v_cvt_pk_bf16_f32 v64, v72, v73")
A("v_cvt_pk_bf16_f32 v65, v74, v75")
A("v_mul_f32 v13, v48, v50")
A("v_mul_f32 v14, v48, v32")
A("v_mul_f32 v15, v48, v34")
for c in range(1, 4):
    A("v_fmac_f32 v13, v%d, v%d" % (48 + 4 * c, 50 + 4 * c))
    A("v_fmac_f32 v14, v%d, v%d" % (48 + 4 * c, 32 + 4 * c))
    A("v_fmac_f32 v15, v%d, v%d" % (48 + 4 * c, 34 + 4 * c))
A("v_rcp_f32 v16, v13")
A("s_mul_i32 s92, s%d, %d" % (sW, HS))
A("s_add_u32 s92, s92, %d" % L_HT)
A("v_lshlrev_b32 v9, 3, v9")
A("v_add_u32 v9, s92, v9")
A("ds_write_b64 v9, v[64:65]")
for e in (14, 15):
    A("v_mul_f32 v17, v%d, v16" % e)
    A("v_fma_f32 v18, -v17, v13, v%d" % e)
    A("v_fma_f32 v%d, v18, v16, v17" % e)
A("v_cvt_pk_bf16_f32 v14, v14, v15")
A("s_mul_i32 s92, s%d, %d" % (sW, OS))
A("s_add_u32 s92, s92, %d" % L_OT)
A("v_lshlrev_b32 v9, 2, v%d" % vLANE)
A("v_add_u32 v9, s92, v9")
A("ds_write_b32 v9, v14")
A("s_waitcnt lgkmcnt(0)")
A("s_barrier")

C("P9")
A("s_cmp_gt_u32 s%d, 4" % sRL)
A("s_cbranch_scc1 L_fbar")
A("v_and_b32 v9, 7, v%d" % vI)
A("s_cmp_eq_u32 s%d, 4" % sRL)
A("s_cbranch_scc1 L_p9e")
A("v_mul_u32_u24 v7, %d, v9" % OS)
A("v_lshl_add_u32 v7, v%d, 4, v7" % vG)
A("v_add_u32 v7, %d, v7" % L_OT)
def gemv_pre(nk):
    for t in range(nk):
        A("ds_read_b128 v[%d:%d], v7 offset:%d" % (64 + 4 * t, 67 + 4 * t, t * 64))
    for t in range(nk):
        A("s_waitcnt lgkmcnt(%d)" % (nk - 1 - t))
        c = "0" if t == 0 else "v[12:15]"
        A("v_mfma_f32_16x16x32_bf16 v[12:15], v[%d:%d], v[%d:%d], %s" % (96 + 4 * t, 99 + 4 * t, 64 + 4 * t, 67 + 4 * t, c))
    A("s_nop 7")
    A("s_nop 1")
gemv_pre(4)
C("addr: voff = i*131072 + g*32 ; soff = SG + j*4096 + (64ns+16ct)*8")
A("v_lshlrev_b32 v8, 17, v%d" % vI)
A("v_lshl_add_u32 v8, v%d, 4, v8" % vG)
A("s_lshl_b32 s92, s%d, 12" % sJ)
A("s_lshl_b32 s93, s%d, 9" % sNS)
A("s_add_u32 s92, s92, s93")
A("s_lshl_b32 s93, s%d, 7" % sRL)
A("s_add_u32 s92, s92, s93")
A("s_add_u32 s92, s92, %d" % SG)
A("s_branch L_p9pub")
L("L_p9e")
A("v_mul_u32_u24 v7, %d, v9" % HS)
A("v_lshl_add_u32 v7, v%d, 4, v7" % vG)
A("v_add_u32 v7, %d, v7" % L_HT)
gemv_pre(7)
C("addr: voff = i*32768 + g*32 ; soff = DG + kg*4096 + ct*128")
A("v_lshlrev_b32 v8, 15, v%d" % vI)
A("v_lshl_add_u32 v8, v%d, 4, v8" % vG)
A("s_lshl_b32 s92, s%d, 12" % sx)
A("s_lshl_b32 s93, s%d, 7" % sy)
A("s_add_u32 s92, s92, s93")
A("s_add_u32 s92, s92, %d" % DG)
L("L_p9pub")
A("v_mov_b32 v16, v12")
A("v_mov_b32 v17, v%d" % vTAG)
A("v_mov_b32 v18, v13")
A("v_mov_b32 v19, v%d" % vTAG)
A("v_mov_b32 v20, v14")
A("v_mov_b32 v21, v%d" % vTAG)
A("v_mov_b32 v22, v15")
A("v_mov_b32 v23, v%d" % vTAG)
A("v_cmp_gt_u32 vcc, 8, v%d" % vI)
A("s_and_saveexec_b64 s[%d:%d], vcc" % (sEX, sEX + 1))
A("buffer_store_dwordx4 v[16:19], v8, %s, s92 offen sc1" % srd(sWS))
A("buffer_store_dwordx4 v[20:23], v8, %s, s92 offen offset:64 sc1" % srd(sWS))
A("s_mov_b64 exec, s[%d:%d]" % (sEX, sEX + 1))

C("P10: voff = (l>>3)*4096 + (l&7)*16")
A("v_lshrrev_b32 v8, 3, v%d" % vLANE)
A("v_and_b32 v9, 7, v%d" % vLANE)
A("v_lshlrev_b32 v10, 4, v9")
A("v_lshl_add_u32 v8, v8, 12, v10")
A("s_lshl_b32 s93, s%d, 7" % sy)
A("s_cmp_eq_u32 s%d, 4" % sRL)
A("s_cbranch_scc1 L_p10d")
A("s_lshl_b32 s92, s%d, 17" % sx)
A("s_lshl_b32 s94, s%d, 15" % sRL)
A("s_add_u32 s92, s92, s94")
A("s_add_u32 s92, s92, %d" % SG)
A("s_branch L_p10j")
L("L_p10d")
A("s_lshl_b32 s92, s%d, 15" % sx)
A("s_add_u32 s92, s92, %d" % DG)
L("L_p10j")
A("s_add_u32 s92, s92, s93")
STAMP()
NP = opt["fpipe"]
sets = [32 + 4 * k for k in range(NP)]
for k in range(NP):
    A("buffer_load_dwordx4 v[%d:%d], v8, %s, s92 offen sc1" % (sets[k], sets[k] + 3, srd(sWS)))
    if k + 1 < NP and opt["fsleep"]:
        A("s_sleep %d" % opt["fsleep"])
L("L_fretry")
for k in range(NP):
    r = sets[k]
    A("s_waitcnt vmcnt(%d)" % (NP - 1))
    A("v_xor_b32 v16, v%d, v%d" % (r + 1, vTAG))
    A("v_xor_b32 v17, v%d, v%d" % (r + 3, vTAG))
    A("v_or_b32 v16, v16, v17")
    A("v_mov_b32 v12, v%d" % r)
    A("v_mov_b32 v14, v%d" % (r + 2))
    A("v_cmp_ne_u32 vcc, 0, v16")
    A("s_cbranch_vccz L_fok")
    A("buffer_load_dwordx4 v[%d:%d], v8, %s, s92 offen sc1" % (r, r + 3, srd(sWS)))
A("s_add_u32 s%d, s%d, 1" % (sSPIN, sSPIN))
A("s_cmp_lt_u32 s%d, %d" % (sSPIN, opt["spin"]))
A("s_cbranch_scc1 L_fretry")
L("L_fok")
A("s_nop 1")
A("v_add_f32_dpp v12, v12, v12 row_ror:8 row_mask:0xf bank_mask:0xf")
A("v_add_f32_dpp v14, v14, v14 row_ror:8 row_mask:0xf bank_mask:0xf")
crossrow(12, 16, "v_add_f32")
crossrow(14, 16, "v_add_f32")
A("v_mov_b32 v13, v14")
A("s_lshl_b32 s92, s%d, 6" % sRL)
A("s_add_u32 s92, s92, %d" % L_FIN)
A("v_and_b32 v10, 3, v9")
A("v_lshrrev_b32 v9, 2, v9")
A("v_lshlrev_b32 v9, 3, v9")
A("v_lshl_add_u32 v9, v10, 4, v9")
A("v_add_u32 v9, s92, v9")
A("ds_write_b64 v9, v[12:13]")
A("s_waitcnt lgkmcnt(0)")
L("L_fbar")
A("s_barrier")
STAMP()
A("s_cmp_lg_u32 s%d, 0" % sW)
A("s_cbranch_scc1 L_done")
A("v_lshlrev_b32 v9, 2, v%d" % vI)
A("v_add_u32 v9, %d, v9" % L_FIN)
for k in range(5):
    A("ds_read_b32 v%d, v9 offset:%d" % (12 + k, k * 64))
A("s_waitcnt lgkmcnt(0)")
A("v_add_f32 v12, v12, v13")
A("v_add_f32 v14, v14, v15")
A("v_add_f32 v12, v12, v14")
A("v_cvt_pk_bf16_f32 v12, v12, v16")
unpack(12, 13, 14)
A("v_mul_f32 v15, s%d, v14" % sLOG2E)
A("v_exp_f32 v15, -v15")
A("s_nop 0")
A("v_add_f32 v15, 1.0, v15")
A("v_rcp_f32 v16, v15")
A("s_nop 0")
A("v_mul_f32 v17, v14, v16")
A("v_fma_f32 v18, -v17, v15, v14")
A("v_fma_f32 v17, v18, v16, v17")
A("v_cvt_pk_bf16_f32 v17, v17, v17")
A("v_lshlrev_b32 v17, 16, v17")
A("v_mul_f32 v17, v13, v17")
A("v_cvt_pk_bf16_f32 v17, v17, v17")
A("v_lshlrev_b32 v17, 16, v17")
A("v_lshlrev_b32 v18, 16, v%d" % vXF)
A("v_add_f32 v17, v18, v17")
A("v_cvt_pk_bf16_f32 v17, v17, v17")
A("v_lshlrev_b32 v9, 1, v%d" % vI)
A("s_mov_b64 exec, 0xffff")
A("buffer_store_short v17, v9, %s, s%d offen" % (srd(sOUT), sT2))
A("s_cmp_lg_u32 s2, 0")
A("s_cbranch_scc1 L_done")
A("s_mov_b64 exec, 1")
A("buffer_store_dword v%d, v31, %s, 0 offen sc1" % (vTAG, srd(sWS)))
L("L_done")
if opt["stamps"]:
    A("s_mov_b64 exec, -1")
    A("v_writelane_b32 v128, s%d, 16" % sSPIN)
    if opt["dbg"]:
        A("s_memrealtime s[96:97]")
        A("s_waitcnt lgkmcnt(0)")
        A("v_writelane_b32 v128, s96, 14")
        A("v_readlane_b32 s96, v128, 0")
        A("s_not_b32 s96, s96")
        A("v_writelane_b32 v128, s96, 15")
        A("s_mov_b32 s4, s24")
        A("s_and_b32 s5, s25, 0xffff")
        A("s_mov_b32 s6, 256")
        A("s_mov_b32 s7, 0x00020000")
        A("v_lshlrev_b32 v9, 2, v%d" % vLANE)
        A("s_mov_b64 exec, 0xffff")
        A("buffer_atomic_umax v128, v9, s[4:7], 0 offen")
        A("s_endpgm")
    A("s_lshl_b32 s92, s2, 3")
    A("s_add_u32 s92, s92, s%d" % sW)
    A("s_lshl_b32 s92, s92, 7")
    A("s_add_u32 s92, s92, %d" % (4 << 20))
    A("v_lshlrev_b32 v9, 2, v%d" % vLANE)
    A("s_mov_b64 exec, 0xffffffff")
    A("buffer_store_dword v128, v9, %s, s92 offen" % srd(sWS))
L("L_end")
A("s_endpgm")
out.append('.section .rodata,"a"')
out.append(".p2align 6")
out.append(".amdhsa_kernel " + K)
out.append("  .amdhsa_next_free_vgpr %d" % (136 if opt["stamps"] else 128))
out.append("  .amdhsa_next_free_sgpr %d" % (100 if opt["stamps"] else 96))
out.append("  .amdhsa_accum_offset %d" % (136 if opt["stamps"] else 128))
out.append("  .amdhsa_group_segment_fixed_size 0")
out.append("  .amdhsa_kernarg_size 96")
out.append("  .amdhsa_user_sgpr_count 2")
out.append("  .amdhsa_user_sgpr_kernarg_segment_ptr 1")
out.append("  .amdhsa_system_sgpr_workgroup_id_x 1")
out.append(".end_amdhsa_kernel")
open(sys.argv[1], "w").write("\n".join(out) + "\n")
print("LDS", LDS_BYTES, "WS", WS_BYTES, "stamps", nstamp[0])
```

```python
import sys

NAME = "recurrent_scan__sliding_block_cached__glu_gated_bilinear__decode"
HEADER = open("cdna_kernels/%s.s.ref" % NAME).read().split("; @launch")[0]

opt = dict(
    kwait=4,
    nt=0,
    spin=1000000,
    sleep=0,
    stamps=0,
    ntw=0,
    exp=0,
    kearly=2,
    qpw=2,
    fpipe=3,
    fsleep=8,
    ldspad=0,
    rsh=0,
    dbg=0,
    perm=0,
    hold=0,
    bar0=1,
)
for a in sys.argv[2:]:
    k, v = a.split("=")
    opt[k] = int(v)

GEN = 0
QG = 4096
HG = QG + 8 * 16384
OG = 262144
MLG = OG + 32 * 8 * 4 * 1024
SG = 1376256
DG = SG + 8 * 32 * 4096
WS_BYTES = DG + 8 * 8 * 4096
assert HG + 16 * 7168 <= OG and MLG + 32 * 8 * 4 * 16 <= SG

L_WQ = 0
L_OW = 0
L_WG = 16384
L_WU = 24576
L_WO = 32768
L_WD = 49152
L_XN = 57344
XS = 1088
L_Q = L_XN + 8 * XS
L_HT = L_Q + 1024
HS = 528
L_OT = L_HT + 8 * HS
OS = 272
L_ML = L_OT + 8 * OS
L_FIN = L_ML + 256
L_FLAG = L_FIN + 320
L_QP = L_XN + 8 * XS + 1024 + 8 * HS + 8 * OS + 256 + 320 + 64
L_GP = L_HT
assert L_QP == L_FLAG + 64
LDS_BYTES = L_QP + 4096
LDS_BYTES = (LDS_BYTES + 63) // 64 * 64
if opt["ldspad"]:
    LDS_BYTES = opt["ldspad"]

out = []
def A(s): out.append("    " + s)
def L(s): out.append(s + ":")
def C(s): out.append("    ; " + s)

sX, sK, sV, sWQ, sWO, sWG, sWU, sWD, sOUT, sWS = [28 + 4 * i for i in range(10)]
def srd(r): return "s[%d:%d]" % (r, r + 3)
sW, sx, sy = 68, 69, 70
sSELLO, sSELHI, sSPIN = 80, 81, 82
sSCALE, sLOG2E = 83, 86
sEX = 84
sKVOFF, sT0, sT1, sT2, sT3 = 71, 72, 73, 74, 75
sJ, sNS, sB, sCc = 76, 77, 78, 79
sWOoff, sWDoff, sW6 = 87, 88, 89
sMAT = 87
sRL = 88

vLANE, vI, vG, vTAG, vXF = 1, 2, 3, 4, 5
NT = " nt" if opt["nt"] else ""
NTW = " nt" if opt["ntw"] else ""

nstamp = [0]
def STAMP():
    if not opt["stamps"]:
        return
    A("s_memrealtime s[96:97]")
    A("s_waitcnt lgkmcnt(0)")
    A("v_writelane_b32 v128, s96, %d" % nstamp[0])
    nstamp[0] += 1

nlab = [0]
def waitv(base):
    n = nlab[0]; nlab[0] += 1
    A("s_cmp_gt_u32 s%d, 4" % sRL)
    A("s_cbranch_scc1 L_wv%d_a" % n)
    A("s_cmp_eq_u32 s%d, 4" % sRL)
    A("s_cbranch_scc1 L_wv%d_b" % n)
    A("s_waitcnt vmcnt(%d)" % (base + 4))
    A("s_branch L_wv%d_c" % n)
    L("L_wv%d_b" % n)
    A("s_waitcnt vmcnt(%d)" % (base + 7))
    A("s_branch L_wv%d_c" % n)
    L("L_wv%d_a" % n)
    A("s_waitcnt vmcnt(%d)" % base)
    L("L_wv%d_c" % n)

def allsum(x, t):
    for m in ("quad_perm:[1,0,3,2]", "quad_perm:[2,3,0,1]", "row_half_mirror", "row_mirror"):
        A("s_nop 1")
        A("v_add_f32_dpp v%d, v%d, v%d %s row_mask:0xf bank_mask:0xf" % (x, x, x, m))
    crossrow(x, t, "v_add_f32")

def crossrow(x, t, op):
    A("v_mov_b32 v%d, v%d" % (t, x))
    A("s_nop 1")
    A("v_permlane16_swap_b32 v%d, v%d" % (x, t))
    A("%s v%d, v%d, v%d" % (op, x, x, t))
    A("v_mov_b32 v%d, v%d" % (t, x))
    A("s_nop 1")
    A("v_permlane32_swap_b32 v%d, v%d" % (x, t))
    A("%s v%d, v%d, v%d" % (op, x, x, t))

def unpack(src, lo, hi):
    A("v_lshlrev_b32 v%d, 16, v%d" % (lo, src))
    A("v_and_b32 v%d, 0xffff0000, v%d" % (hi, src))

def tagcheck(tags, ta, tb, retry):
    assert len(tags) >= 2
    A("v_min_u32 v%d, v%d, v%d" % (ta, tags[0], tags[1]))
    A("v_max_u32 v%d, v%d, v%d" % (tb, tags[0], tags[1]))
    rest = tags[2:]
    while rest:
        if len(rest) >= 2:
            A("v_min3_u32 v%d, v%d, v%d, v%d" % (ta, ta, rest[0], rest[1]))
            A("v_max3_u32 v%d, v%d, v%d, v%d" % (tb, tb, rest[0], rest[1]))
            rest = rest[2:]
        else:
            A("v_min_u32 v%d, v%d, v%d" % (ta, ta, rest[0]))
            A("v_max_u32 v%d, v%d, v%d" % (tb, tb, rest[0]))
            rest = rest[1:]
    A("v_xor_b32 v%d, v%d, v%d" % (ta, ta, vTAG))
    A("v_xor_b32 v%d, v%d, v%d" % (tb, tb, vTAG))
    A("v_or_b32 v%d, v%d, v%d" % (ta, ta, tb))
    A("v_cmp_ne_u32 vcc, 0, v%d" % ta)
    A("s_cbranch_vccz %s_ok" % retry)
    A("s_add_u32 s%d, s%d, 1" % (sSPIN, sSPIN))
    A("s_cmp_lt_u32 s%d, %d" % (sSPIN, opt["spin"]))
    if opt["sleep"]:
        A("s_sleep %d" % opt["sleep"])
    A("s_cbranch_scc1 %s" % retry)
    L(retry + "_ok")

def gemv_tile(ks, abase, astep, ahalf, bbase, acc, bank0, bank1):
    if isinstance(ks, int):
        ks = list(range(ks))
    batches = [ks[s:s + 4] for s in range(0, len(ks), 4)]
    def issue(bi):
        for n, t in enumerate(batches[bi]):
            r = (bank1 if bi & 1 else bank0) + n * 8
            A("ds_read_b64_tr_b16 v[%d:%d], v%d offset:%d" % (r, r + 1, abase, t * astep))
            A("ds_read_b64_tr_b16 v[%d:%d], v%d offset:%d" % (r + 2, r + 3, abase, t * astep + ahalf))
            A("ds_read_b128 v[%d:%d], v%d offset:%d" % (r + 4, r + 7, bbase, t * 64))
    issue(0)
    first = True
    for bi in range(len(batches)):
        A("s_waitcnt lgkmcnt(0)")
        if bi + 1 < len(batches):
            issue(bi + 1)
        for n, t in enumerate(batches[bi]):
            r = (bank1 if bi & 1 else bank0) + n * 8
            c = "0" if first else "v[%d:%d]" % (acc, acc + 3)
            first = False
            A("v_mfma_f32_16x16x32_bf16 v[%d:%d], v[%d:%d], v[%d:%d], %s" % (acc, acc + 3, r, r + 3, r + 4, r + 7, c))
    A("s_nop 7")
    A("s_nop 1")

K = NAME + "_kernel"
out.append(HEADER.rstrip("\n"))
out.append("; @launch grid=(256,1,1) block=(512,1,1) lds=%d" % LDS_BYTES)
out.append('.amdgcn_target "amdgcn-amd-amdhsa--gfx950"')
out.append(".text")
out.append(".globl " + K)
out.append(".p2align 8")
out.append(".type %s,@function" % K)
L(K)
A("s_cmp_ge_u32 s2, 256")
A("s_cbranch_scc1 L_end")
if opt["stamps"]:
    A("v_mov_b32 v128, 0")
STAMP()
if opt["hold"]:
    A("s_memrealtime s[98:99]")
A("s_load_dwordx16 s[4:19], s[0:1], 0")
A("s_load_dwordx8 s[20:27], s[0:1], 64")
A("v_lshrrev_b32 v6, 6, v0")
A("v_and_b32 v%d, 63, v0" % vLANE)
A("v_and_b32 v%d, 15, v0" % vI)
A("v_bfe_u32 v%d, v0, 4, 2" % vG)
A("v_readfirstlane_b32 s%d, v6" % sW)
A("s_add_u32 s%d, s%d, %d" % (sRL, sW, opt["rsh"]))
A("s_and_b32 s%d, s%d, 7" % (sRL, sRL))
A("s_and_b32 s%d, s2, 7" % sx)
A("s_lshr_b32 s%d, s2, 3" % sy)
A("s_mov_b32 s%d, 0x05040100" % sSELLO)
A("s_mov_b32 s%d, 0x07060302" % sSELHI)
A("s_mov_b32 s%d, 0" % sSPIN)
A("s_mov_b32 s%d, 0x3db504f3" % sSCALE)
A("s_mov_b32 s%d, 0x3fb8aa3b" % sLOG2E)
C("attention role: hkv=sx, b=sy>>2, c=sy&3")
A("s_xor_b32 s%d, s%d, %d" % (sT0, sy, opt["perm"]))
A("s_lshr_b32 s%d, s%d, 2" % (sB, sT0))
A("s_and_b32 s%d, s%d, 3" % (sCc, sT0))
A("s_lshl_b32 s%d, s%d, 23" % (sKVOFF, sB))
A("s_lshl_b32 s%d, s%d, 20" % (sT0, sx))
A("s_add_u32 s%d, s%d, s%d" % (sKVOFF, sKVOFF, sT0))
A("s_lshl_b32 s%d, s%d, 16" % (sT0, sCc))
A("s_add_u32 s%d, s%d, s%d" % (sKVOFF, sKVOFF, sT0))
A("s_lshl_b32 s%d, s%d, 13" % (sT0, sW))
A("s_add_u32 s%d, s%d, s%d" % (sKVOFF, sKVOFF, sT0))
A("s_add_u32 s%d, s%d, %d" % (sKVOFF, sKVOFF, 3072 * 256))
C("o-proj role: j = sx*4 + (sy>>3), ns = sy&7")
A("s_lshl_b32 s%d, s%d, 2" % (sJ, sx))
A("s_lshr_b32 s%d, s%d, 3" % (sT0, sy))
A("s_add_u32 s%d, s%d, s%d" % (sJ, sJ, sT0))
A("s_and_b32 s%d, s%d, 7" % (sNS, sy))
C("per-lane offsets")
A("v_lshlrev_b32 v6, 4, v%d" % vLANE)
A("v_lshrrev_b32 v7, 1, v%d" % vLANE)
A("v_and_b32 v8, 1, v%d" % vLANE)
A("v_lshlrev_b32 v8, 4, v8")
A("v_lshl_add_u32 v9, v7, 13, v8")
A("v_lshl_add_u32 v28, v7, 10, v8")
A("v_mul_u32_u24 v10, 3584, v7")
A("v_add_u32 v10, v10, v8")
A("v_lshrrev_b32 v7, 3, v%d" % vLANE)
A("v_and_b32 v8, 7, v%d" % vLANE)
A("v_lshlrev_b32 v8, 4, v8")
A("v_mov_b32 v29, %d" % L_FLAG)
C("K voff = (8*(i>>2) + (i&3))*256 + g*16")
A("v_lshrrev_b32 v7, 2, v%d" % vI)
A("v_and_b32 v8, 3, v%d" % vI)
A("v_lshl_add_u32 v7, v7, 3, v8")
A("v_lshlrev_b32 v7, 8, v7")
A("v_lshl_add_u32 v11, v%d, 4, v7" % vG)
C("V voff = 8g*256 + i*16")
A("v_lshlrev_b32 v7, 11, v%d" % vG)
A("v_lshl_add_u32 v30, v%d, 4, v7" % vI)
A("v_mov_b32 v31, 0")
C("x for final: x[b_f=sx][16*sy + (l&15)]")
A("v_lshlrev_b32 v12, 1, v%d" % vI)
A("s_lshl_b32 s%d, s%d, 10" % (sT2, sx))
A("s_lshl_b32 s%d, s%d, 5" % (sT0, sy))
A("s_add_u32 s%d, s%d, s%d" % (sT2, sT2, sT0))
C("wq soffset = cb*32 + 2*wave*262144 ; cb = sx*32+sy")
A("s_lshl_b32 s%d, s%d, 5" % (sT0, sx))
A("s_add_u32 s%d, s%d, s%d" % (sT0, sT0, sy))
A("s_lshl_b32 s%d, s%d, 5" % (sT0, sT0))
A("s_lshl_b32 s%d, s%d, 19" % (sT1, sW))
A("s_add_u32 s%d, s%d, s%d" % (sT0, sT0, sT1))
C("gu tile: syc=min(sy,27); mat = syc>=14; ti = syc-14*mat; soff = 448*sx + 32*ti + 2*wave*32*3584")
A("s_min_u32 s%d, s%d, 27" % (sT3, sy))
A("s_cmp_ge_u32 s%d, 14" % sT3)
A("s_cselect_b32 s%d, 1, 0" % sMAT)
A("s_mul_i32 s%d, s%d, 14" % (sT1, sMAT))
A("s_sub_u32 s90, s%d, s%d" % (sT3, sT1))
A("s_lshl_b32 s%d, s90, 5" % sT3)
A("s_mul_i32 s%d, s%d, 448" % (sT1, sx))
A("s_add_u32 s%d, s%d, s%d" % (sT3, sT3, sT1))
A("s_mul_i32 s%d, s%d, %d" % (sT1, sW, 64 * 3584))
A("s_add_u32 s%d, s%d, s%d" % (sT3, sT3, sT1))
A("s_lshl_b32 s91, s%d, 10" % sW)
A("s_waitcnt lgkmcnt(0)")
def mksrd(r, p, nbytes):
    A("s_mov_b32 s%d, s%d" % (r, p))
    A("s_and_b32 s%d, s%d, 0xffff" % (r + 1, p + 1))
    A("s_mov_b32 s%d, %d" % (r + 2, nbytes))
    A("s_mov_b32 s%d, 0x00020000" % (r + 3))
mksrd(sWS, 26, (8 << 20) if opt["stamps"] else WS_BYTES)
mksrd(sX, 4, 8192)
mksrd(sWQ, 10, 512 * 4096 * 2)
STAMP()
C("first loads")
A("s_load_dword s95, s[26:27], 0")
A("buffer_load_ushort v%d, v12, %s, s%d offen" % (vXF, srd(sX), sT2))
A("buffer_load_dwordx4 v[20:23], v6, %s, s91 offen" % srd(sX))
A("s_lshl_b32 s92, s91, 1")
A("s_add_u32 s92, s92, %d" % L_WQ)
A("s_mov_b32 m0, s92")
A("s_add_u32 s93, s%d, 262144" % sT0)
A("buffer_load_dwordx4 v9, %s, s%d offen%s lds" % (srd(sWQ), sT0, NTW))
A("s_add_u32 s92, s92, 1024")
A("s_mov_b32 m0, s92")
mksrd(sK, 6, 64 << 20)
A("buffer_load_dwordx4 v9, %s, s93 offen%s lds" % (srd(sWQ), NTW))
A("s_cmp_eq_u32 s%d, 0" % sMAT)
A("s_cselect_b32 s16, s16, s18")
A("s_cselect_b32 s17, s17, s19")
mksrd(sWG, 16, 512 * 1792 * 2)
A("s_lshl_b32 s92, s91, 1")
A("s_add_u32 s92, s92, %d" % L_WG)
A("s_mov_b32 m0, s92")
A("s_add_u32 s93, s%d, %d" % (sT3, 32 * 3584))
A("buffer_load_dwordx4 v10, %s, s%d offen%s lds" % (srd(sWG), sT3, NTW))
A("s_add_u32 s92, s92, 1024")
A("s_mov_b32 m0, s92")
A("s_nop 0")
A("buffer_load_dwordx4 v10, %s, s93 offen%s lds" % (srd(sWG), NTW))
if opt["bar0"]:
    A("s_barrier")
KE = opt["kearly"]
def kloads(lo, hi):
    for n in range(lo, hi):
        T, t = n >> 2, n & 3
        r = 32 + n * 4
        A("buffer_load_dwordx4 v[%d:%d], v11, %s, s%d offen offset:%d%s" % (r, r + 3, srd(sK), sKVOFF, T * 1024 + t * 64, NT))
kloads(0, KE)
mksrd(sV, 8, 64 << 20)
mksrd(sWO, 12, 4096 * 512 * 2)
mksrd(sWD, 20, 1792 * 512 * 2)
mksrd(sOUT, 22, 8192)

C("P1 layernorm")
A("s_waitcnt vmcnt(%d)" % (4 + KE))
STAMP()
A("s_waitcnt lgkmcnt(0)")
A("s_add_u32 s95, s95, 1")
A("v_mov_b32 v%d, s95" % vTAG)
for k in range(4):
    unpack(20 + k, 12 + 2 * k, 13 + 2 * k)
A("v_add_f32 v20, v12, v13")
A("v_add_f32 v21, v14, v15")
A("v_add_f32 v22, v16, v17")
A("v_add_f32 v23, v18, v19")
A("v_add_f32 v20, v20, v21")
A("v_add_f32 v22, v22, v23")
A("v_add_f32 v20, v20, v22")
allsum(20, 21)
A("v_mul_f32 v20, 0x3b000000, v20")
A("v_sub_f32 v21, v12, v20")
A("v_mul_f32 v22, v21, v21")
for k in range(1, 8):
    A("v_sub_f32 v21, v%d, v20" % (12 + k))
    A("v_fmac_f32 v22, v21, v21")
allsum(22, 21)
A("v_mul_f32 v22, 0x3b000000, v22")
A("v_cvt_pk_bf16_f32 v20, v20, v22")
A("v_and_b32 v22, 0xffff0000, v20")
A("v_lshlrev_b32 v20, 16, v20")
A("v_add_f32 v22, 0x3727c5ac, v22")
A("v_cvt_pk_bf16_f32 v22, v22, v22")
A("v_lshlrev_b32 v22, 16, v22")
A("v_sqrt_f32 v22, v22")
A("s_nop 0")
A("v_cvt_pk_bf16_f32 v22, v22, v22")
A("v_lshlrev_b32 v22, 16, v22")
A("v_rcp_f32 v23, v22")
for k in range(4):
    a, b = 12 + 2 * k, 13 + 2 * k
    A("v_sub_f32 v%d, v%d, v20" % (a, a))
    A("v_sub_f32 v%d, v%d, v20" % (b, b))
    A("v_cvt_pk_bf16_f32 v21, v%d, v%d" % (a, b))
    unpack(21, a, b)
    for e in (a, b):
        A("v_mul_f32 v21, v%d, v23" % e)
        A("v_fma_f32 v24, -v21, v22, v%d" % e)
        A("v_fma_f32 v%d, v24, v23, v21" % e)
    A("v_cvt_pk_bf16_f32 v%d, v%d, v%d" % (96 + k, a, b))
A("s_mul_i32 s92, s%d, %d" % (sW, XS))
A("s_add_u32 s92, s92, %d" % L_XN)
A("v_add_u32 v7, s92, v6")
A("ds_write_b128 v7, v[96:99]")
A("ds_write_b32 v29, v31")
A("s_waitcnt vmcnt(%d) lgkmcnt(0)" % KE)
STAMP()
A("s_barrier")
STAMP()

C("P2")
A("v_and_b32 v7, 7, v%d" % vI)
A("v_mul_u32_u24 v7, %d, v7" % XS)
A("v_lshl_add_u32 v7, v%d, 4, v7" % vG)
A("v_add_u32 v7, %d, v7" % L_XN)
A("s_lshl_b32 s92, s%d, 7" % sW)
A("v_add_u32 v16, s92, v7")
A("v_lshlrev_b32 v8, 8, v%d" % vG)
A("v_lshl_add_u32 v8, v%d, 3, v8" % vI)
A("s_lshl_b32 s92, s%d, 11" % sW)
A("s_add_u32 s92, s92, %d" % L_WQ)
A("v_add_u32 v8, s92, v8")
A("v_add_u32 v9, %d, v8" % (L_WG - L_WQ))
for n in range(2):
    A("ds_read_b64_tr_b16 v[%d:%d], v8 offset:%d" % (64 + 4 * n, 65 + 4 * n, n * 1024))
    A("ds_read_b64_tr_b16 v[%d:%d], v8 offset:%d" % (66 + 4 * n, 67 + 4 * n, n * 1024 + 128))
    A("ds_read_b128 v[%d:%d], v16 offset:%d" % (80 + 4 * n, 83 + 4 * n, n * 64))
for n in range(2):
    A("ds_read_b64_tr_b16 v[%d:%d], v9 offset:%d" % (72 + 4 * n, 73 + 4 * n, n * 1024))
    A("ds_read_b64_tr_b16 v[%d:%d], v9 offset:%d" % (74 + 4 * n, 75 + 4 * n, n * 1024 + 128))
A("s_waitcnt lgkmcnt(4)")
A("v_mfma_f32_16x16x32_bf16 v[12:15], v[64:67], v[80:83], 0")
A("v_mfma_f32_16x16x32_bf16 v[12:15], v[68:71], v[84:87], v[12:15]")
A("s_waitcnt lgkmcnt(0)")
A("v_mfma_f32_16x16x32_bf16 v[16:19], v[72:75], v[80:83], 0")
A("v_mfma_f32_16x16x32_bf16 v[16:19], v[76:79], v[84:87], v[16:19]")
C("partials -> L_QP/L_GP + wave*512 + (g*8 + i)*16 for i<8")
A("v_lshl_add_u32 v8, v%d, 3, v%d" % (vG, vI))
A("v_lshlrev_b32 v8, 4, v8")
A("v_add_u32 v8, %d, v8" % L_QP)
A("s_lshl_b32 s92, s%d, 9" % sW)
A("v_add_u32 v9, s92, v8")
A("v_cmp_gt_u32 vcc, 8, v%d" % vI)
A("s_and_saveexec_b64 s[%d:%d], vcc" % (sEX, sEX + 1))
A("s_nop 7")
A("ds_write_b128 v9, v[12:15]")
A("v_subrev_u32 v9, %d, v9" % (L_QP - L_GP))
A("ds_write_b128 v9, v[16:19]")
A("s_mov_b64 exec, s[%d:%d]" % (sEX, sEX + 1))
A("s_waitcnt lgkmcnt(0)")
A("s_barrier")
A("s_cmp_gt_u32 s%d, 1" % sW)
A("s_cbranch_scc1 L_p3")
C("wave 0 reduces q, wave 1 reduces gate/up")
A("s_mul_i32 s92, s%d, %d" % (sW, L_QP - L_GP))
A("v_subrev_u32 v8, s92, v8")
A("v_cmp_gt_u32 vcc, 8, v%d" % vI)
A("s_and_saveexec_b64 s[%d:%d], vcc" % (sEX, sEX + 1))
for v in range(8):
    A("ds_read_b128 v[%d:%d], v8 offset:%d" % (64 + 4 * v, 67 + 4 * v, v * 512))
A("s_cmp_eq_u32 s%d, 1" % sW)
A("s_cbranch_scc1 L_p2g")
C("q: addr = QG + b*16384 + cb*64 + g*16")
A("v_lshlrev_b32 v8, 14, v%d" % vI)
A("s_lshl_b32 s92, s%d, 5" % sx)
A("s_add_u32 s92, s92, s%d" % sy)
A("s_lshl_b32 s92, s92, 6")
A("s_add_u32 s92, s92, %d" % QG)
A("s_branch L_p2j")
L("L_p2g")
C("gu: addr = HG + (mat*8 + b)*7168 + sx*896 + ti*64 + g*16 ; skip if sy>=28")
A("v_mul_u32_u24 v8, 7168, v%d" % vI)
A("s_mul_i32 s92, s%d, %d" % (sMAT, 8 * 7168))
A("s_mul_i32 s93, s%d, 896" % sx)
A("s_add_u32 s92, s92, s93")
A("s_lshl_b32 s93, s90, 6")
A("s_add_u32 s92, s92, s93")
A("s_add_u32 s92, s92, %d" % HG)
A("s_cmp_lt_u32 s%d, 28" % sy)
A("s_cbranch_scc1 L_p2j")
A("s_waitcnt lgkmcnt(0)")
A("s_mov_b64 exec, s[%d:%d]" % (sEX, sEX + 1))
A("s_branch L_p3")
L("L_p2j")
A("v_lshl_add_u32 v8, v%d, 4, v8" % vG)
A("s_waitcnt lgkmcnt(0)")
for v in range(1, 8):
    for r in range(4):
        A("v_add_f32 v%d, v%d, v%d" % (64 + r, 64 + r, 64 + 4 * v + r))
A("v_cvt_pk_bf16_f32 v16, v64, v65")
A("v_cvt_pk_bf16_f32 v18, v66, v67")
A("v_mov_b32 v17, v%d" % vTAG)
A("v_mov_b32 v19, v%d" % vTAG)
A("buffer_store_dwordx4 v[16:19], v8, %s, s92 offen sc1" % srd(sWS))
A("s_mov_b64 exec, s[%d:%d]" % (sEX, sEX + 1))

L("L_p3")
STAMP()
kloads(KE, 8)
for e in range(8):
    r = 64 + e * 4
    A("buffer_load_dwordx4 v[%d:%d], v30, %s, s%d offen offset:%d%s" % (r, r + 3, srd(sV), sKVOFF, e * 256, NT))
A("s_cmp_gt_u32 s%d, 4" % sRL)
A("s_cbranch_scc1 L_p3x")
A("s_cmp_eq_u32 s%d, 4" % sRL)
A("s_cbranch_scc1 L_p3d")
C("wo column tile: soff = (128j + 32q)*1024 + ns*128 + wave*32 ; LDS L_WO + wave*4096 + q*1024")
A("s_lshl_b32 s92, s%d, 17" % sJ)
A("s_lshl_b32 s93, s%d, 7" % sNS)
A("s_add_u32 s92, s92, s93")
A("s_lshl_b32 s93, s%d, 5" % sRL)
A("s_add_u32 s92, s92, s93")
A("s_lshl_b32 s93, s%d, 12" % sRL)
A("s_add_u32 s93, s93, %d" % L_WO)
for q in range(4):
    A("s_mov_b32 m0, s93")
    A("s_add_u32 s93, s93, 1024")
    A("buffer_load_dwordx4 v28, %s, s92 offen%s lds" % (srd(sWO), NTW))
    A("s_add_u32 s92, s92, 32768")
A("s_branch L_p3x")
L("L_p3d")
C("wd tile: soff = (224kg + 32q)*1024 + ct*32")
A("s_mul_i32 s92, s%d, %d" % (sx, 224 * 1024))
A("s_lshl_b32 s93, s%d, 5" % sy)
A("s_add_u32 s92, s92, s93")
A("s_mov_b32 s93, %d" % L_WD)
for q in range(7):
    A("s_mov_b32 m0, s93")
    A("s_add_u32 s93, s93, 1024")
    A("buffer_load_dwordx4 v28, %s, s92 offen%s lds" % (srd(sWD), NTW))
    A("s_add_u32 s92, s92, 32768")
L("L_p3x")
STAMP()
A("s_cmp_lg_u32 s%d, %d" % (sW, opt["qpw"]))
A("s_cbranch_scc1 L_qf")
C("q poll addr = QG + b*16384 + hkv*2048 + l*32")
A("s_lshl_b32 s92, s%d, 14" % sB)
A("s_lshl_b32 s93, s%d, 11" % sx)
A("s_add_u32 s92, s92, s93")
A("s_add_u32 s92, s92, %d" % QG)
A("v_lshlrev_b32 v8, 5, v%d" % vLANE)
L("L_qretry")
A("buffer_load_dwordx4 v[12:15], v8, %s, s92 offen sc1" % srd(sWS))
A("buffer_load_dwordx4 v[16:19], v8, %s, s92 offen offset:16 sc1" % srd(sWS))
A("s_waitcnt vmcnt(0)")
tagcheck([13, 15, 17, 19], 20, 21, "L_qretry")
A("v_mov_b32 v20, v12")
A("v_mov_b32 v21, v14")
A("v_mov_b32 v22, v16")
A("v_mov_b32 v23, v18")
A("v_mov_b32 v9, 1")
A("v_add_u32 v8, %d, v6" % L_Q)
A("ds_write_b128 v8, v[20:23]")
A("s_waitcnt lgkmcnt(0)")
A("ds_write_b32 v29, v9")
C("wait for q flag in LDS")
L("L_qf")
A("ds_read_b32 v12, v29")
A("s_waitcnt lgkmcnt(0)")
A("v_readfirstlane_b32 s92, v12")
A("s_add_u32 s%d, s%d, 1" % (sSPIN, sSPIN))
A("s_cmp_eq_u32 s92, 1")
A("s_cbranch_scc1 L_qf_ok")
A("s_cmp_lt_u32 s%d, %d" % (sSPIN, opt["spin"] * 16))
A("s_cbranch_scc1 L_qf")
L("L_qf_ok")
A("s_mov_b32 s%d, 0" % sSPIN)
STAMP()

C("P5")
A("v_and_b32 v9, 3, v%d" % vI)
A("v_lshlrev_b32 v9, 8, v9")
A("v_lshl_add_u32 v9, v%d, 4, v9" % vG)
A("v_add_u32 v9, %d, v9" % L_Q)
for t in range(4):
    A("ds_read_b128 v[%d:%d], v9 offset:%d" % (96 + 4 * t, 99 + 4 * t, t * 64))
waitv(8)
A("s_waitcnt lgkmcnt(0)")
for T in range(2):
    for t in range(4):
        r = 32 + (T * 4 + t) * 4
        acc = 112 + 4 * T
        c = "0" if t == 0 else "v[%d:%d]" % (acc, acc + 3)
        A("v_mfma_f32_16x16x32_bf16 v[%d:%d], v[%d:%d], v[%d:%d], %s" % (acc, acc + 3, r, r + 3, 96 + 4 * t, 99 + 4 * t, c))
A("s_nop 7")
A("s_nop 1")
for k in range(4):
    A("v_cvt_pk_bf16_f32 v%d, v%d, v%d" % (20 + k, 112 + 2 * k, 113 + 2 * k))
for k in range(4):
    unpack(20 + k, 12 + 2 * k, 13 + 2 * k)
for k in range(8):
    A("v_mul_f32 v%d, s%d, v%d" % (12 + k, sSCALE, 12 + k))
for k in range(4):
    A("v_cvt_pk_bf16_f32 v%d, v%d, v%d" % (20 + k, 12 + 2 * k, 13 + 2 * k))
for k in range(4):
    unpack(20 + k, 12 + 2 * k, 13 + 2 * k)
A("v_max3_f32 v20, v12, v13, v14")
A("v_max3_f32 v20, v20, v15, v16")
A("v_max3_f32 v20, v20, v17, v18")
A("v_max_f32 v20, v20, v19")
crossrow(20, 21, "v_max_f32")
for k in range(8):
    A("v_sub_f32 v%d, v%d, v20" % (12 + k, 12 + k))
for k in range(8):
    A("v_mul_f32 v%d, s%d, v%d" % (12 + k, sLOG2E, 12 + k))
for k in range(8):
    A("v_exp_f32 v%d, v%d" % (12 + k, 12 + k))
A("s_nop 0")
A("v_add_f32 v22, v12, v13")
A("v_add_f32 v23, v14, v15")
A("v_add_f32 v22, v22, v16")
A("v_add_f32 v23, v23, v17")
A("v_add_f32 v22, v22, v18")
A("v_add_f32 v23, v23, v19")
A("v_add_f32 v22, v22, v23")
crossrow(22, 21, "v_add_f32")
for k in range(4):
    A("v_cvt_pk_bf16_f32 v%d, v%d, v%d" % (24 + k, 12 + 2 * k, 13 + 2 * k))

C("P6")
C("LDS addr for partial O: L_OW + wave*2048 + i*512 + g*128 (+j*16)")
A("s_lshl_b32 s92, s%d, 11" % sW)
A("s_add_u32 s92, s92, %d" % L_OW)
A("v_lshlrev_b32 v9, 9, v%d" % vI)
A("v_lshl_add_u32 v9, v%d, 7, v9" % vG)
A("v_add_u32 v9, s92, v9")
A("s_lshl_b32 s92, s%d, 2" % sW)
A("s_add_u32 s92, s92, %d" % L_ML)
A("v_lshlrev_b32 v10, 5, v%d" % vI)
A("v_add_u32 v10, s92, v10")
STAMP()
waitv(0)
STAMP()
for j in range(8):
    w = j >> 1
    sel = sSELHI if (j & 1) else sSELLO
    for u in range(4):
        A("v_perm_b32 v%d, v%d, v%d, s%d" % (32 + 4 * j + u, 64 + 4 * (2 * u + 1) + w, 64 + 4 * (2 * u) + w, sel))
A("s_nop 1")
for j in range(8):
    A("v_mfma_f32_16x16x32_bf16 v[%d:%d], v[%d:%d], v[24:27], 0" % (64 + 4 * j, 67 + 4 * j, 32 + 4 * j, 35 + 4 * j))
A("v_cmp_gt_u32 vcc, 4, v%d" % vI)
A("s_and_saveexec_b64 s[%d:%d], vcc" % (sEX, sEX + 1))
A("ds_write_b32 v10, v20")
A("ds_write_b32 v10, v22 offset:128")
A("s_nop 7")
for j in range(8):
    A("ds_write_b128 v9, v[%d:%d] offset:%d" % (64 + 4 * j, 67 + 4 * j, j * 16))
A("s_mov_b64 exec, s[%d:%d]" % (sEX, sEX + 1))
A("s_waitcnt lgkmcnt(0)")
A("s_barrier")

C("P7")
A("s_cmp_ge_u32 s%d, 4" % sW)
A("s_cbranch_scc1 L_p8")
C("addr = L_OW + h*512 + (l>>4)*128 + (l&3)*32 + ((l>>2)&3)*4")
A("s_lshl_b32 s92, s%d, 9" % sW)
A("s_add_u32 s92, s92, %d" % L_OW)
A("v_lshlrev_b32 v9, 7, v%d" % vG)
A("v_and_b32 v10, 3, v%d" % vLANE)
A("v_lshl_add_u32 v9, v10, 5, v9")
A("v_bfe_u32 v10, v%d, 2, 2" % vLANE)
A("v_lshl_add_u32 v9, v10, 2, v9")
A("v_add_u32 v9, s92, v9")
A("s_lshl_b32 s92, s%d, 5" % sW)
A("s_add_u32 s92, s92, %d" % L_ML)
A("v_mov_b32 v10, s92")
A("ds_read_b128 v[32:35], v10")
A("ds_read_b128 v[36:39], v10 offset:16")
A("ds_read_b128 v[40:43], v10 offset:128")
A("ds_read_b128 v[44:47], v10 offset:144")
for v in range(5):
    A("ds_read_b32 v%d, v9 offset:%d" % (48 + 2 * v, v * 2048))
    A("ds_read_b32 v%d, v9 offset:%d" % (49 + 2 * v, v * 2048 + 16))
A("s_waitcnt lgkmcnt(10)")
for v in range(5, 8):
    pass
A("v_max3_f32 v12, v32, v33, v34")
A("v_max3_f32 v12, v12, v35, v36")
A("v_max3_f32 v12, v12, v37, v38")
A("v_max_f32 v12, v12, v39")
for v in range(8):
    A("v_sub_f32 v%d, v%d, v12" % (32 + v, 32 + v))
for v in range(8):
    A("v_mul_f32 v%d, s%d, v%d" % (32 + v, sLOG2E, 32 + v))
for v in range(8):
    A("v_exp_f32 v%d, v%d" % (32 + v, 32 + v))
A("s_waitcnt lgkmcnt(4)")
for v in range(5, 8):
    A("ds_read_b32 v%d, v9 offset:%d" % (48 + 2 * v, v * 2048))
    A("ds_read_b32 v%d, v9 offset:%d" % (49 + 2 * v, v * 2048 + 16))
A("v_mul_f32 v14, v32, v40")
for v in range(1, 8):
    A("v_fmac_f32 v14, v%d, v%d" % (32 + v, 40 + v))
A("s_waitcnt lgkmcnt(0)")
A("v_mul_f32 v16, v32, v48")
A("v_mul_f32 v18, v32, v49")
for v in range(1, 8):
    A("v_fmac_f32 v16, v%d, v%d" % (32 + v, 48 + 2 * v))
    A("v_fmac_f32 v18, v%d, v%d" % (32 + v, 49 + 2 * v))
A("v_mov_b32 v13, v%d" % vTAG)
A("v_mov_b32 v15, v%d" % vTAG)
A("v_mov_b32 v17, v%d" % vTAG)
A("v_mov_b32 v19, v%d" % vTAG)
C("slot = ((hkv*4+wave)*8 + b)*4 + c")
A("s_lshl_b32 s92, s%d, 2" % sx)
A("s_add_u32 s92, s92, s%d" % sW)
A("s_lshl_b32 s92, s92, 3")
A("s_add_u32 s92, s92, s%d" % sB)
A("s_lshl_b32 s92, s92, 2")
A("s_add_u32 s92, s92, s%d" % sCc)
A("s_lshl_b32 s93, s92, 10")
A("s_add_u32 s93, s93, %d" % OG)
A("s_lshl_b32 s92, s92, 4")
A("s_add_u32 s92, s92, %d" % MLG)
A("buffer_store_dwordx4 v[16:19], v6, %s, s93 offen sc1" % srd(sWS))
A("s_mov_b64 exec, 1")
A("buffer_store_dwordx4 v[12:15], v31, %s, s92 offen sc1" % srd(sWS))
A("s_mov_b64 exec, -1")

L("L_p8")
STAMP()
C("slot base = (j*8 + wave)*4")
A("s_lshl_b32 s92, s%d, 3" % sJ)
A("s_add_u32 s92, s92, s%d" % sW)
A("s_lshl_b32 s93, s92, 12")
A("s_add_u32 s93, s93, %d" % OG)
A("s_lshl_b32 s92, s92, 6")
A("s_add_u32 s92, s92, %d" % MLG)
A("s_mul_i32 s94, s%d, 7168" % sW)
A("s_mul_i32 s95, s%d, 896" % sx)
A("s_add_u32 s94, s94, s95")
A("s_add_u32 s94, s94, %d" % HG)
A("v_min_u32 v9, 55, v%d" % vLANE)
A("v_lshlrev_b32 v10, 4, v9")
A("v_add_u32 v11, %d, v10" % (8 * 7168))
def oload(c):
    A("buffer_load_dwordx4 v[%d:%d], v6, %s, s93 offen offset:%d sc1" % (32 + 4 * c, 35 + 4 * c, srd(sWS), c * 1024))
def hload():
    A("buffer_load_dwordx4 v[64:67], v10, %s, s94 offen sc1" % srd(sWS))
    A("buffer_load_dwordx4 v[68:71], v11, %s, s94 offen sc1" % srd(sWS))
A("v_and_b32 v18, 3, v%d" % vLANE)
A("v_lshlrev_b32 v18, 4, v18")
hload()
A("buffer_load_dwordx4 v[48:51], v18, %s, s92 offen sc1" % srd(sWS))
C("A-fragment preload for P9 (own tile)")
A("s_mov_b32 s95, 0")
A("s_cmp_gt_u32 s%d, 4" % sRL)
A("s_cbranch_scc1 L_mchk")
A("v_lshlrev_b32 v8, 8, v%d" % vG)
A("v_lshl_add_u32 v8, v%d, 3, v8" % vI)
A("s_lshl_b32 s90, s%d, 12" % sRL)
A("s_add_u32 s90, s90, %d" % L_WO)
assert L_WO + 4 * 4096 == L_WD
A("v_add_u32 v8, s90, v8")
A("s_waitcnt vmcnt(3)")
for t in range(7):
    A("ds_read_b64_tr_b16 v[%d:%d], v8 offset:%d" % (96 + 4 * t, 97 + 4 * t, t * 1024))
    A("ds_read_b64_tr_b16 v[%d:%d], v8 offset:%d" % (98 + 4 * t, 99 + 4 * t, t * 1024 + 128))
L("L_mchk")
A("s_waitcnt vmcnt(0) lgkmcnt(0)")
A("v_xor_b32 v12, v49, v%d" % vTAG)
A("v_xor_b32 v13, v51, v%d" % vTAG)
A("v_or_b32 v12, v12, v13")
A("v_cmp_eq_u32 vcc, 0, v12")
A("s_and_b32 s90, vcc_lo, 15")
A("s_andn2_b32 s90, s90, s95")
A("s_or_b32 s95, s95, s90")
for c in range(4):
    A("s_bitcmp0_b32 s90, %d" % c)
    A("s_cbranch_scc1 L_msk%d" % c)
    oload(c)
    L("L_msk%d" % c)
A("s_cmp_eq_u32 s95, 15")
A("s_cbranch_scc1 L_ochk")
A("s_add_u32 s%d, s%d, 1" % (sSPIN, sSPIN))
A("s_cmp_ge_u32 s%d, %d" % (sSPIN, opt["spin"]))
A("s_cbranch_scc1 L_ochk")
A("buffer_load_dwordx4 v[48:51], v18, %s, s92 offen sc1" % srd(sWS))
A("s_branch L_mchk")
L("L_ochk")
A("s_waitcnt vmcnt(0)")
tg = [33, 35, 37, 39, 41, 43, 45, 47, 65, 67, 69, 71]
A("v_xor_b32 v12, v%d, v%d" % (tg[0], vTAG))
for t in tg[1:]:
    A("v_xor_b32 v13, v%d, v%d" % (t, vTAG))
    A("v_or_b32 v12, v12, v13")
A("v_cmp_ne_u32 vcc, 0, v12")
A("s_cbranch_vccz L_ook")
A("s_add_u32 s%d, s%d, 1" % (sSPIN, sSPIN))
A("s_cmp_ge_u32 s%d, %d" % (sSPIN, opt["spin"]))
A("s_cbranch_scc1 L_ook")
for c in range(4):
    oload(c)
hload()
A("s_branch L_ochk")
L("L_ook")
STAMP()
C("broadcast M_c, L_c from lanes 0..3")
for c in range(4):
    A("v_readlane_b32 s%d, v48, %d" % (8 + c, c))
    A("v_readlane_b32 s%d, v50, %d" % (12 + c, c))
A("s_nop 1")
for c in range(4):
    A("v_mov_b32 v%d, s%d" % (48 + 4 * c, 8 + c))
    A("v_mov_b32 v%d, s%d" % (50 + 4 * c, 12 + c))
A("v_max3_f32 v12, v48, v52, v56")
A("v_max_f32 v12, v12, v60")
for c in range(4):
    A("v_sub_f32 v%d, v%d, v12" % (48 + 4 * c, 48 + 4 * c))
for c in range(4):
    A("v_mul_f32 v%d, s%d, v%d" % (48 + 4 * c, sLOG2E, 48 + 4 * c))
for c in range(4):
    A("v_exp_f32 v%d, v%d" % (48 + 4 * c, 48 + 4 * c))
unpack(64, 72, 73)
unpack(66, 74, 75)
unpack(68, 76, 77)
unpack(70, 78, 79)
for r in range(4):
    A("v_mul_f32 v%d, v%d, v%d" % (72 + r, 72 + r, 76 + r))
A("v_cvt_pk_bf16_f32 v64, v72, v73")
A("v_cvt_pk_bf16_f32 v65, v74, v75")
A("v_mul_f32 v13, v48, v50")
A("v_mul_f32 v14, v48, v32")
A("v_mul_f32 v15, v48, v34")
for c in range(1, 4):
    A("v_fmac_f32 v13, v%d, v%d" % (48 + 4 * c, 50 + 4 * c))
    A("v_fmac_f32 v14, v%d, v%d" % (48 + 4 * c, 32 + 4 * c))
    A("v_fmac_f32 v15, v%d, v%d" % (48 + 4 * c, 34 + 4 * c))
A("v_rcp_f32 v16, v13")
A("s_mul_i32 s92, s%d, %d" % (sW, HS))
A("s_add_u32 s92, s92, %d" % L_HT)
A("v_lshlrev_b32 v9, 3, v9")
A("v_add_u32 v9, s92, v9")
A("ds_write_b64 v9, v[64:65]")
for e in (14, 15):
    A("v_mul_f32 v17, v%d, v16" % e)
    A("v_fma_f32 v18, -v17, v13, v%d" % e)
    A("v_fma_f32 v%d, v18, v16, v17" % e)
A("v_cvt_pk_bf16_f32 v14, v14, v15")
A("s_mul_i32 s92, s%d, %d" % (sW, OS))
A("s_add_u32 s92, s92, %d" % L_OT)
A("v_lshlrev_b32 v9, 2, v%d" % vLANE)
A("v_add_u32 v9, s92, v9")
A("ds_write_b32 v9, v14")
A("s_waitcnt lgkmcnt(0)")
A("s_barrier")

C("P9")
A("s_cmp_gt_u32 s%d, 4" % sRL)
A("s_cbranch_scc1 L_fbar")
A("v_and_b32 v9, 7, v%d" % vI)
A("s_cmp_eq_u32 s%d, 4" % sRL)
A("s_cbranch_scc1 L_p9e")
A("v_mul_u32_u24 v7, %d, v9" % OS)
A("v_lshl_add_u32 v7, v%d, 4, v7" % vG)
A("v_add_u32 v7, %d, v7" % L_OT)
def gemv_pre(nk):
    for t in range(nk):
        A("ds_read_b128 v[%d:%d], v7 offset:%d" % (64 + 4 * t, 67 + 4 * t, t * 64))
    for t in range(nk):
        A("s_waitcnt lgkmcnt(%d)" % (nk - 1 - t))
        c = "0" if t == 0 else "v[12:15]"
        A("v_mfma_f32_16x16x32_bf16 v[12:15], v[%d:%d], v[%d:%d], %s" % (96 + 4 * t, 99 + 4 * t, 64 + 4 * t, 67 + 4 * t, c))
    A("s_nop 7")
    A("s_nop 1")
gemv_pre(4)
C("addr: voff = i*131072 + g*32 ; soff = SG + j*4096 + (64ns+16ct)*8")
A("v_lshlrev_b32 v8, 17, v%d" % vI)
A("v_lshl_add_u32 v8, v%d, 4, v8" % vG)
A("s_lshl_b32 s92, s%d, 12" % sJ)
A("s_lshl_b32 s93, s%d, 9" % sNS)
A("s_add_u32 s92, s92, s93")
A("s_lshl_b32 s93, s%d, 7" % sRL)
A("s_add_u32 s92, s92, s93")
A("s_add_u32 s92, s92, %d" % SG)
A("s_branch L_p9pub")
L("L_p9e")
A("v_mul_u32_u24 v7, %d, v9" % HS)
A("v_lshl_add_u32 v7, v%d, 4, v7" % vG)
A("v_add_u32 v7, %d, v7" % L_HT)
gemv_pre(7)
C("addr: voff = i*32768 + g*32 ; soff = DG + kg*4096 + ct*128")
A("v_lshlrev_b32 v8, 15, v%d" % vI)
A("v_lshl_add_u32 v8, v%d, 4, v8" % vG)
A("s_lshl_b32 s92, s%d, 12" % sx)
A("s_lshl_b32 s93, s%d, 7" % sy)
A("s_add_u32 s92, s92, s93")
A("s_add_u32 s92, s92, %d" % DG)
L("L_p9pub")
A("v_mov_b32 v16, v12")
A("v_mov_b32 v17, v%d" % vTAG)
A("v_mov_b32 v18, v13")
A("v_mov_b32 v19, v%d" % vTAG)
A("v_mov_b32 v20, v14")
A("v_mov_b32 v21, v%d" % vTAG)
A("v_mov_b32 v22, v15")
A("v_mov_b32 v23, v%d" % vTAG)
A("v_cmp_gt_u32 vcc, 8, v%d" % vI)
A("s_and_saveexec_b64 s[%d:%d], vcc" % (sEX, sEX + 1))
A("buffer_store_dwordx4 v[16:19], v8, %s, s92 offen sc1" % srd(sWS))
A("buffer_store_dwordx4 v[20:23], v8, %s, s92 offen offset:64 sc1" % srd(sWS))
A("s_mov_b64 exec, s[%d:%d]" % (sEX, sEX + 1))

C("P10: voff = (l>>3)*4096 + (l&7)*16")
A("v_lshrrev_b32 v8, 3, v%d" % vLANE)
A("v_and_b32 v9, 7, v%d" % vLANE)
A("v_lshlrev_b32 v10, 4, v9")
A("v_lshl_add_u32 v8, v8, 12, v10")
A("s_lshl_b32 s93, s%d, 7" % sy)
A("s_cmp_eq_u32 s%d, 4" % sRL)
A("s_cbranch_scc1 L_p10d")
A("s_lshl_b32 s92, s%d, 17" % sx)
A("s_lshl_b32 s94, s%d, 15" % sRL)
A("s_add_u32 s92, s92, s94")
A("s_add_u32 s92, s92, %d" % SG)
A("s_branch L_p10j")
L("L_p10d")
A("s_lshl_b32 s92, s%d, 15" % sx)
A("s_add_u32 s92, s92, %d" % DG)
L("L_p10j")
A("s_add_u32 s92, s92, s93")
STAMP()
NP = opt["fpipe"]
sets = [32 + 4 * k for k in range(NP)]
for k in range(NP):
    A("buffer_load_dwordx4 v[%d:%d], v8, %s, s92 offen sc1" % (sets[k], sets[k] + 3, srd(sWS)))
    if k + 1 < NP and opt["fsleep"]:
        A("s_sleep %d" % opt["fsleep"])
L("L_fretry")
for k in range(NP):
    r = sets[k]
    A("s_waitcnt vmcnt(%d)" % (NP - 1))
    A("v_xor_b32 v16, v%d, v%d" % (r + 1, vTAG))
    A("v_xor_b32 v17, v%d, v%d" % (r + 3, vTAG))
    A("v_or_b32 v16, v16, v17")
    A("v_mov_b32 v12, v%d" % r)
    A("v_mov_b32 v14, v%d" % (r + 2))
    A("v_cmp_ne_u32 vcc, 0, v16")
    A("s_cbranch_vccz L_fok")
    A("buffer_load_dwordx4 v[%d:%d], v8, %s, s92 offen sc1" % (r, r + 3, srd(sWS)))
A("s_add_u32 s%d, s%d, 1" % (sSPIN, sSPIN))
A("s_cmp_lt_u32 s%d, %d" % (sSPIN, opt["spin"]))
A("s_cbranch_scc1 L_fretry")
L("L_fok")
A("s_nop 1")
A("v_add_f32_dpp v12, v12, v12 row_ror:8 row_mask:0xf bank_mask:0xf")
A("v_add_f32_dpp v14, v14, v14 row_ror:8 row_mask:0xf bank_mask:0xf")
crossrow(12, 16, "v_add_f32")
crossrow(14, 16, "v_add_f32")
A("v_mov_b32 v13, v14")
A("s_lshl_b32 s92, s%d, 6" % sRL)
A("s_add_u32 s92, s92, %d" % L_FIN)
A("v_and_b32 v10, 3, v9")
A("v_lshrrev_b32 v9, 2, v9")
A("v_lshlrev_b32 v9, 3, v9")
A("v_lshl_add_u32 v9, v10, 4, v9")
A("v_add_u32 v9, s92, v9")
A("ds_write_b64 v9, v[12:13]")
A("s_waitcnt lgkmcnt(0)")
L("L_fbar")
A("s_barrier")
STAMP()
A("s_cmp_lg_u32 s%d, 0" % sW)
A("s_cbranch_scc1 L_done")
A("v_lshlrev_b32 v9, 2, v%d" % vI)
A("v_add_u32 v9, %d, v9" % L_FIN)
for k in range(5):
    A("ds_read_b32 v%d, v9 offset:%d" % (12 + k, k * 64))
A("s_waitcnt lgkmcnt(0)")
A("v_add_f32 v12, v12, v13")
A("v_add_f32 v14, v14, v15")
A("v_add_f32 v12, v12, v14")
A("v_cvt_pk_bf16_f32 v12, v12, v16")
unpack(12, 13, 14)
A("v_mul_f32 v15, s%d, v14" % sLOG2E)
A("v_exp_f32 v15, -v15")
A("s_nop 0")
A("v_add_f32 v15, 1.0, v15")
A("v_rcp_f32 v16, v15")
A("s_nop 0")
A("v_mul_f32 v17, v14, v16")
A("v_fma_f32 v18, -v17, v15, v14")
A("v_fma_f32 v17, v18, v16, v17")
A("v_cvt_pk_bf16_f32 v17, v17, v17")
A("v_lshlrev_b32 v17, 16, v17")
A("v_mul_f32 v17, v13, v17")
A("v_cvt_pk_bf16_f32 v17, v17, v17")
A("v_lshlrev_b32 v17, 16, v17")
A("v_lshlrev_b32 v18, 16, v%d" % vXF)
A("v_add_f32 v17, v18, v17")
A("v_cvt_pk_bf16_f32 v17, v17, v17")
A("v_lshlrev_b32 v9, 1, v%d" % vI)
A("s_mov_b64 exec, 0xffff")
A("buffer_store_short v17, v9, %s, s%d offen" % (srd(sOUT), sT2))
A("s_cmp_lg_u32 s2, 0")
A("s_cbranch_scc1 L_done")
A("s_mov_b64 exec, 1")
A("buffer_store_dword v%d, v31, %s, 0 offen sc1" % (vTAG, srd(sWS)))
L("L_done")
if opt["hold"]:
    A("s_add_u32 s98, s98, %d" % (opt["hold"] * 100))
    L("L_hold")
    A("s_memrealtime s[96:97]")
    A("s_waitcnt lgkmcnt(0)")
    A("s_sub_u32 s96, s96, s98")
    A("s_cmp_lt_i32 s96, 0")
    A("s_cbranch_scc1 L_hold")
if opt["stamps"]:
    A("s_mov_b64 exec, -1")
    A("v_writelane_b32 v128, s%d, 16" % sSPIN)
    if opt["dbg"]:
        A("s_memrealtime s[96:97]")
        A("s_waitcnt lgkmcnt(0)")
        A("v_writelane_b32 v128, s96, 14")
        A("v_readlane_b32 s96, v128, 0")
        A("s_not_b32 s96, s96")
        A("v_writelane_b32 v128, s96, 15")
        A("s_mov_b32 s4, s24")
        A("s_and_b32 s5, s25, 0xffff")
        A("s_mov_b32 s6, 256")
        A("s_mov_b32 s7, 0x00020000")
        A("v_lshlrev_b32 v9, 2, v%d" % vLANE)
        A("s_mov_b64 exec, 0xffff")
        A("buffer_atomic_umax v128, v9, s[4:7], 0 offen")
        A("s_endpgm")
    A("s_lshl_b32 s92, s2, 3")
    A("s_add_u32 s92, s92, s%d" % sW)
    A("s_lshl_b32 s92, s92, 7")
    A("s_add_u32 s92, s92, %d" % (4 << 20))
    A("v_lshlrev_b32 v9, 2, v%d" % vLANE)
    A("s_mov_b64 exec, 0xffffffff")
    A("buffer_store_dword v128, v9, %s, s92 offen" % srd(sWS))
L("L_end")
A("s_endpgm")
out.append('.section .rodata,"a"')
out.append(".p2align 6")
out.append(".amdhsa_kernel " + K)
out.append("  .amdhsa_next_free_vgpr %d" % (136 if opt["stamps"] else 128))
out.append("  .amdhsa_next_free_sgpr %d" % (100 if (opt["stamps"] or opt["hold"]) else 96))
out.append("  .amdhsa_accum_offset %d" % (136 if opt["stamps"] else 128))
out.append("  .amdhsa_group_segment_fixed_size 0")
out.append("  .amdhsa_kernarg_size 96")
out.append("  .amdhsa_user_sgpr_count 2")
out.append("  .amdhsa_user_sgpr_kernarg_segment_ptr 1")
out.append("  .amdhsa_system_sgpr_workgroup_id_x 1")
out.append(".end_amdhsa_kernel")
open(sys.argv[1], "w").write("\n".join(out) + "\n")
print("LDS", LDS_BYTES, "WS", WS_BYTES, "stamps", nstamp[0])
```

```python
import sys

NAME = "recurrent_scan__sliding_block_cached__glu_gated_bilinear__decode"
HEADER = open("cdna_kernels/%s.s.ref" % NAME).read().split("; @launch")[0]

opt = dict(
    kwait=4,
    nt=0,
    spin=1000000,
    sleep=0,
    stamps=0,
    ntw=0,
    exp=0,
    kearly=2,
    qpw=2,
    fpipe=3,
    fsleep=8,
    ldspad=0,
    rsh=0,
    dbg=0,
    perm=0,
    hold=0,
    spec=0,
    ptouch=0,
    tdefer=0,
    bar0=1,
)
for a in sys.argv[2:]:
    k, v = a.split("=")
    opt[k] = int(v)

GEN = 0
QG = 4096
HG = QG + 8 * 16384
OG = 262144
MLG = OG + 32 * 8 * 4 * 1024
SG = 1376256
DG = SG + 8 * 32 * 4096
WS_BYTES = DG + 8 * 8 * 4096
assert HG + 16 * 7168 <= OG and MLG + 32 * 8 * 4 * 16 <= SG

L_WQ = 0
L_OW = 0
L_WG = 16384
L_WU = 24576
L_WO = 32768
L_WD = 49152
L_XN = 57344
XS = 1088
L_Q = L_XN + 8 * XS
L_HT = L_Q + 1024
HS = 528
L_OT = L_HT + 8 * HS
OS = 272
L_ML = L_OT + 8 * OS
L_FIN = L_ML + 256
L_FLAG = L_FIN + 320
L_QP = L_XN + 8 * XS + 1024 + 8 * HS + 8 * OS + 256 + 320 + 64
L_GP = L_HT
assert L_QP == L_FLAG + 64
LDS_BYTES = L_QP + 4096
LDS_BYTES = (LDS_BYTES + 63) // 64 * 64
if opt["ldspad"]:
    LDS_BYTES = opt["ldspad"]

out = []
def A(s): out.append("    " + s)
def L(s): out.append(s + ":")
def C(s): out.append("    ; " + s)

sX, sK, sV, sWQ, sWO, sWG, sWU, sWD, sOUT, sWS = [28 + 4 * i for i in range(10)]
def srd(r): return "s[%d:%d]" % (r, r + 3)
sW, sx, sy = 68, 69, 70
sSELLO, sSELHI, sSPIN = 80, 81, 82
sSCALE, sLOG2E = 83, 86
sEX = 84
sKVOFF, sT0, sT1, sT2, sT3 = 71, 72, 73, 74, 75
sJ, sNS, sB, sCc = 76, 77, 78, 79
sWOoff, sWDoff, sW6 = 87, 88, 89
sMAT = 87
sRL = 88

vLANE, vI, vG, vTAG, vXF = 1, 2, 3, 4, 5
NT = " nt" if opt["nt"] else ""
NTW = " nt" if opt["ntw"] else ""

nstamp = [0]
def STAMP():
    if not opt["stamps"]:
        return
    A("s_memrealtime s[96:97]")
    A("s_waitcnt lgkmcnt(0)")
    A("v_writelane_b32 v128, s96, %d" % nstamp[0])
    nstamp[0] += 1

nlab = [0]
def waitv(base):
    n = nlab[0]; nlab[0] += 1
    A("s_cmp_gt_u32 s%d, 4" % sRL)
    A("s_cbranch_scc1 L_wv%d_a" % n)
    A("s_cmp_eq_u32 s%d, 4" % sRL)
    A("s_cbranch_scc1 L_wv%d_b" % n)
    A("s_waitcnt vmcnt(%d)" % (base + 4))
    A("s_branch L_wv%d_c" % n)
    L("L_wv%d_b" % n)
    A("s_waitcnt vmcnt(%d)" % (base + 7))
    A("s_branch L_wv%d_c" % n)
    L("L_wv%d_a" % n)
    A("s_waitcnt vmcnt(%d)" % base)
    L("L_wv%d_c" % n)

def allsum(x, t):
    for m in ("quad_perm:[1,0,3,2]", "quad_perm:[2,3,0,1]", "row_half_mirror", "row_mirror"):
        A("s_nop 1")
        A("v_add_f32_dpp v%d, v%d, v%d %s row_mask:0xf bank_mask:0xf" % (x, x, x, m))
    crossrow(x, t, "v_add_f32")

def crossrow(x, t, op):
    A("v_mov_b32 v%d, v%d" % (t, x))
    A("s_nop 1")
    A("v_permlane16_swap_b32 v%d, v%d" % (x, t))
    A("%s v%d, v%d, v%d" % (op, x, x, t))
    A("v_mov_b32 v%d, v%d" % (t, x))
    A("s_nop 1")
    A("v_permlane32_swap_b32 v%d, v%d" % (x, t))
    A("%s v%d, v%d, v%d" % (op, x, x, t))

def unpack(src, lo, hi):
    A("v_lshlrev_b32 v%d, 16, v%d" % (lo, src))
    A("v_and_b32 v%d, 0xffff0000, v%d" % (hi, src))

def tagcheck(tags, ta, tb, retry):
    assert len(tags) >= 2
    A("v_min_u32 v%d, v%d, v%d" % (ta, tags[0], tags[1]))
    A("v_max_u32 v%d, v%d, v%d" % (tb, tags[0], tags[1]))
    rest = tags[2:]
    while rest:
        if len(rest) >= 2:
            A("v_min3_u32 v%d, v%d, v%d, v%d" % (ta, ta, rest[0], rest[1]))
            A("v_max3_u32 v%d, v%d, v%d, v%d" % (tb, tb, rest[0], rest[1]))
            rest = rest[2:]
        else:
            A("v_min_u32 v%d, v%d, v%d" % (ta, ta, rest[0]))
            A("v_max_u32 v%d, v%d, v%d" % (tb, tb, rest[0]))
            rest = rest[1:]
    A("v_xor_b32 v%d, v%d, v%d" % (ta, ta, vTAG))
    A("v_xor_b32 v%d, v%d, v%d" % (tb, tb, vTAG))
    A("v_or_b32 v%d, v%d, v%d" % (ta, ta, tb))
    A("v_cmp_ne_u32 vcc, 0, v%d" % ta)
    A("s_cbranch_vccz %s_ok" % retry)
    A("s_add_u32 s%d, s%d, 1" % (sSPIN, sSPIN))
    A("s_cmp_lt_u32 s%d, %d" % (sSPIN, opt["spin"]))
    if opt["sleep"]:
        A("s_sleep %d" % opt["sleep"])
    A("s_cbranch_scc1 %s" % retry)
    L(retry + "_ok")

def gemv_tile(ks, abase, astep, ahalf, bbase, acc, bank0, bank1):
    if isinstance(ks, int):
        ks = list(range(ks))
    batches = [ks[s:s + 4] for s in range(0, len(ks), 4)]
    def issue(bi):
        for n, t in enumerate(batches[bi]):
            r = (bank1 if bi & 1 else bank0) + n * 8
            A("ds_read_b64_tr_b16 v[%d:%d], v%d offset:%d" % (r, r + 1, abase, t * astep))
            A("ds_read_b64_tr_b16 v[%d:%d], v%d offset:%d" % (r + 2, r + 3, abase, t * astep + ahalf))
            A("ds_read_b128 v[%d:%d], v%d offset:%d" % (r + 4, r + 7, bbase, t * 64))
    issue(0)
    first = True
    for bi in range(len(batches)):
        A("s_waitcnt lgkmcnt(0)")
        if bi + 1 < len(batches):
            issue(bi + 1)
        for n, t in enumerate(batches[bi]):
            r = (bank1 if bi & 1 else bank0) + n * 8
            c = "0" if first else "v[%d:%d]" % (acc, acc + 3)
            first = False
            A("v_mfma_f32_16x16x32_bf16 v[%d:%d], v[%d:%d], v[%d:%d], %s" % (acc, acc + 3, r, r + 3, r + 4, r + 7, c))
    A("s_nop 7")
    A("s_nop 1")

K = NAME + "_kernel"
out.append(HEADER.rstrip("\n"))
out.append("; @launch grid=(256,1,1) block=(512,1,1) lds=%d" % LDS_BYTES)
out.append('.amdgcn_target "amdgcn-amd-amdhsa--gfx950"')
out.append(".text")
out.append(".globl " + K)
out.append(".p2align 8")
out.append(".type %s,@function" % K)
L(K)
A("s_cmp_ge_u32 s2, 256")
A("s_cbranch_scc1 L_end")
if opt["stamps"]:
    A("v_mov_b32 v128, 0")
STAMP()
if opt["hold"]:
    A("s_memrealtime s[98:99]")
A("s_load_dwordx16 s[4:19], s[0:1], 0")
A("s_load_dwordx8 s[20:27], s[0:1], 64")
A("v_lshrrev_b32 v6, 6, v0")
A("v_and_b32 v%d, 63, v0" % vLANE)
A("v_and_b32 v%d, 15, v0" % vI)
A("v_bfe_u32 v%d, v0, 4, 2" % vG)
A("v_readfirstlane_b32 s%d, v6" % sW)
A("s_add_u32 s%d, s%d, %d" % (sRL, sW, opt["rsh"]))
A("s_and_b32 s%d, s%d, 7" % (sRL, sRL))
A("s_and_b32 s%d, s2, 7" % sx)
A("s_lshr_b32 s%d, s2, 3" % sy)
A("s_mov_b32 s%d, 0x05040100" % sSELLO)
A("s_mov_b32 s%d, 0x07060302" % sSELHI)
A("s_mov_b32 s%d, 0" % sSPIN)
A("s_mov_b32 s%d, 0x3db504f3" % sSCALE)
A("s_mov_b32 s%d, 0x3fb8aa3b" % sLOG2E)
C("attention role: hkv=sx, b=sy>>2, c=sy&3")
A("s_xor_b32 s%d, s%d, %d" % (sT0, sy, opt["perm"]))
A("s_lshr_b32 s%d, s%d, 2" % (sB, sT0))
A("s_and_b32 s%d, s%d, 3" % (sCc, sT0))
A("s_lshl_b32 s%d, s%d, 23" % (sKVOFF, sB))
A("s_lshl_b32 s%d, s%d, 20" % (sT0, sx))
A("s_add_u32 s%d, s%d, s%d" % (sKVOFF, sKVOFF, sT0))
A("s_lshl_b32 s%d, s%d, 16" % (sT0, sCc))
A("s_add_u32 s%d, s%d, s%d" % (sKVOFF, sKVOFF, sT0))
A("s_lshl_b32 s%d, s%d, 13" % (sT0, sW))
A("s_add_u32 s%d, s%d, s%d" % (sKVOFF, sKVOFF, sT0))
A("s_add_u32 s%d, s%d, %d" % (sKVOFF, sKVOFF, 3072 * 256))
C("o-proj role: j = sx*4 + (sy>>3), ns = sy&7")
A("s_lshl_b32 s%d, s%d, 2" % (sJ, sx))
A("s_lshr_b32 s%d, s%d, 3" % (sT0, sy))
A("s_add_u32 s%d, s%d, s%d" % (sJ, sJ, sT0))
A("s_and_b32 s%d, s%d, 7" % (sNS, sy))
C("per-lane offsets")
A("v_lshlrev_b32 v6, 4, v%d" % vLANE)
A("v_lshrrev_b32 v7, 1, v%d" % vLANE)
A("v_and_b32 v8, 1, v%d" % vLANE)
A("v_lshlrev_b32 v8, 4, v8")
A("v_lshl_add_u32 v9, v7, 13, v8")
A("v_lshl_add_u32 v28, v7, 10, v8")
A("v_mul_u32_u24 v10, 3584, v7")
A("v_add_u32 v10, v10, v8")
A("v_lshrrev_b32 v7, 3, v%d" % vLANE)
A("v_and_b32 v8, 7, v%d" % vLANE)
A("v_lshlrev_b32 v8, 4, v8")
A("v_mov_b32 v29, %d" % L_FLAG)
C("K voff = (8*(i>>2) + (i&3))*256 + g*16")
A("v_lshrrev_b32 v7, 2, v%d" % vI)
A("v_and_b32 v8, 3, v%d" % vI)
A("v_lshl_add_u32 v7, v7, 3, v8")
A("v_lshlrev_b32 v7, 8, v7")
A("v_lshl_add_u32 v11, v%d, 4, v7" % vG)
C("V voff = 8g*256 + i*16")
A("v_lshlrev_b32 v7, 11, v%d" % vG)
A("v_lshl_add_u32 v30, v%d, 4, v7" % vI)
A("v_mov_b32 v31, 0")
C("x for final: x[b_f=sx][16*sy + (l&15)]")
A("v_and_b32 v12, 3, v%d" % vLANE)
A("v_lshlrev_b32 v12, 3, v12")
A("v_bfe_u32 v13, v%d, 2, 1" % vLANE)
A("v_lshl_add_u32 v12, v13, 2, v12")
A("s_lshl_b32 s%d, s%d, 10" % (sT2, sx))
A("s_lshl_b32 s%d, s%d, 5" % (sT0, sy))
A("s_add_u32 s%d, s%d, s%d" % (sT2, sT2, sT0))
C("wq soffset = cb*32 + 2*wave*262144 ; cb = sx*32+sy")
A("s_lshl_b32 s%d, s%d, 5" % (sT0, sx))
A("s_add_u32 s%d, s%d, s%d" % (sT0, sT0, sy))
A("s_lshl_b32 s%d, s%d, 5" % (sT0, sT0))
A("s_lshl_b32 s%d, s%d, 19" % (sT1, sW))
A("s_add_u32 s%d, s%d, s%d" % (sT0, sT0, sT1))
C("gu tile: syc=min(sy,27); mat = syc>=14; ti = syc-14*mat; soff = 448*sx + 32*ti + 2*wave*32*3584")
A("s_min_u32 s%d, s%d, 27" % (sT3, sy))
A("s_cmp_ge_u32 s%d, 14" % sT3)
A("s_cselect_b32 s%d, 1, 0" % sMAT)
A("s_mul_i32 s%d, s%d, 14" % (sT1, sMAT))
A("s_sub_u32 s90, s%d, s%d" % (sT3, sT1))
A("s_lshl_b32 s%d, s90, 5" % sT3)
A("s_mul_i32 s%d, s%d, 448" % (sT1, sx))
A("s_add_u32 s%d, s%d, s%d" % (sT3, sT3, sT1))
A("s_mul_i32 s%d, s%d, %d" % (sT1, sW, 64 * 3584))
A("s_add_u32 s%d, s%d, s%d" % (sT3, sT3, sT1))
A("s_lshl_b32 s91, s%d, 10" % sW)
A("s_waitcnt lgkmcnt(0)")
def mksrd(r, p, nbytes):
    A("s_mov_b32 s%d, s%d" % (r, p))
    A("s_and_b32 s%d, s%d, 0xffff" % (r + 1, p + 1))
    A("s_mov_b32 s%d, %d" % (r + 2, nbytes))
    A("s_mov_b32 s%d, 0x00020000" % (r + 3))
mksrd(sWS, 26, (8 << 20) if opt["stamps"] else WS_BYTES)
mksrd(sX, 4, 8192)
mksrd(sWQ, 10, 512 * 4096 * 2)
STAMP()
C("first loads")
A("s_load_dword s95, s[26:27], 0")
A("buffer_load_dword v%d, v12, %s, s%d offen" % (vXF, srd(sX), sT2))
A("buffer_load_dwordx4 v[20:23], v6, %s, s91 offen" % srd(sX))
A("s_lshl_b32 s92, s91, 1")
A("s_add_u32 s92, s92, %d" % L_WQ)
A("s_mov_b32 m0, s92")
A("s_add_u32 s93, s%d, 262144" % sT0)
A("buffer_load_dwordx4 v9, %s, s%d offen%s lds" % (srd(sWQ), sT0, NTW))
A("s_add_u32 s92, s92, 1024")
A("s_mov_b32 m0, s92")
mksrd(sK, 6, 64 << 20)
A("buffer_load_dwordx4 v9, %s, s93 offen%s lds" % (srd(sWQ), NTW))
A("s_cmp_eq_u32 s%d, 0" % sMAT)
A("s_cselect_b32 s16, s16, s18")
A("s_cselect_b32 s17, s17, s19")
mksrd(sWG, 16, 512 * 1792 * 2)
A("s_lshl_b32 s92, s91, 1")
A("s_add_u32 s92, s92, %d" % L_WG)
A("s_mov_b32 m0, s92")
A("s_add_u32 s93, s%d, %d" % (sT3, 32 * 3584))
A("buffer_load_dwordx4 v10, %s, s%d offen%s lds" % (srd(sWG), sT3, NTW))
A("s_add_u32 s92, s92, 1024")
A("s_mov_b32 m0, s92")
A("s_nop 0")
A("buffer_load_dwordx4 v10, %s, s93 offen%s lds" % (srd(sWG), NTW))
if opt["bar0"]:
    A("s_barrier")
KE = opt["kearly"]
def kloads(lo, hi):
    for n in range(lo, hi):
        T, t = n >> 2, n & 3
        r = 32 + n * 4
        A("buffer_load_dwordx4 v[%d:%d], v11, %s, s%d offen offset:%d%s" % (r, r + 3, srd(sK), sKVOFF, T * 1024 + t * 64, NT))
kloads(0, KE)
mksrd(sV, 8, 64 << 20)
mksrd(sWO, 12, 4096 * 512 * 2)
mksrd(sWD, 20, 1792 * 512 * 2)
mksrd(sOUT, 22, 8192)

C("P1 layernorm")
A("s_waitcnt vmcnt(%d)" % (4 + KE))
STAMP()
A("s_waitcnt lgkmcnt(0)")
A("s_add_u32 s95, s95, 1")
A("v_mov_b32 v%d, s95" % vTAG)
for k in range(4):
    unpack(20 + k, 12 + 2 * k, 13 + 2 * k)
A("v_add_f32 v20, v12, v13")
A("v_add_f32 v21, v14, v15")
A("v_add_f32 v22, v16, v17")
A("v_add_f32 v23, v18, v19")
A("v_add_f32 v20, v20, v21")
A("v_add_f32 v22, v22, v23")
A("v_add_f32 v20, v20, v22")
allsum(20, 21)
A("v_mul_f32 v20, 0x3b000000, v20")
A("v_sub_f32 v21, v12, v20")
A("v_mul_f32 v22, v21, v21")
for k in range(1, 8):
    A("v_sub_f32 v21, v%d, v20" % (12 + k))
    A("v_fmac_f32 v22, v21, v21")
allsum(22, 21)
A("v_mul_f32 v22, 0x3b000000, v22")
A("v_cvt_pk_bf16_f32 v20, v20, v22")
A("v_and_b32 v22, 0xffff0000, v20")
A("v_lshlrev_b32 v20, 16, v20")
A("v_add_f32 v22, 0x3727c5ac, v22")
A("v_cvt_pk_bf16_f32 v22, v22, v22")
A("v_lshlrev_b32 v22, 16, v22")
A("v_sqrt_f32 v22, v22")
A("s_nop 0")
A("v_cvt_pk_bf16_f32 v22, v22, v22")
A("v_lshlrev_b32 v22, 16, v22")
A("v_rcp_f32 v23, v22")
for k in range(4):
    a, b = 12 + 2 * k, 13 + 2 * k
    A("v_sub_f32 v%d, v%d, v20" % (a, a))
    A("v_sub_f32 v%d, v%d, v20" % (b, b))
    A("v_cvt_pk_bf16_f32 v21, v%d, v%d" % (a, b))
    unpack(21, a, b)
    for e in (a, b):
        A("v_mul_f32 v21, v%d, v23" % e)
        A("v_fma_f32 v24, -v21, v22, v%d" % e)
        A("v_fma_f32 v%d, v24, v23, v21" % e)
    A("v_cvt_pk_bf16_f32 v%d, v%d, v%d" % (96 + k, a, b))
A("s_mul_i32 s92, s%d, %d" % (sW, XS))
A("s_add_u32 s92, s92, %d" % L_XN)
A("v_add_u32 v7, s92, v6")
A("ds_write_b128 v7, v[96:99]")
A("ds_write_b32 v29, v31")
A("s_waitcnt vmcnt(%d) lgkmcnt(0)" % KE)
STAMP()
A("s_barrier")
STAMP()

C("P2")
A("v_and_b32 v7, 7, v%d" % vI)
A("v_mul_u32_u24 v7, %d, v7" % XS)
A("v_lshl_add_u32 v7, v%d, 4, v7" % vG)
A("v_add_u32 v7, %d, v7" % L_XN)
A("s_lshl_b32 s92, s%d, 7" % sW)
A("v_add_u32 v16, s92, v7")
A("v_lshlrev_b32 v8, 8, v%d" % vG)
A("v_lshl_add_u32 v8, v%d, 3, v8" % vI)
A("s_lshl_b32 s92, s%d, 11" % sW)
A("s_add_u32 s92, s92, %d" % L_WQ)
A("v_add_u32 v8, s92, v8")
A("v_add_u32 v9, %d, v8" % (L_WG - L_WQ))
for n in range(2):
    A("ds_read_b64_tr_b16 v[%d:%d], v8 offset:%d" % (64 + 4 * n, 65 + 4 * n, n * 1024))
    A("ds_read_b64_tr_b16 v[%d:%d], v8 offset:%d" % (66 + 4 * n, 67 + 4 * n, n * 1024 + 128))
    A("ds_read_b128 v[%d:%d], v16 offset:%d" % (80 + 4 * n, 83 + 4 * n, n * 64))
for n in range(2):
    A("ds_read_b64_tr_b16 v[%d:%d], v9 offset:%d" % (72 + 4 * n, 73 + 4 * n, n * 1024))
    A("ds_read_b64_tr_b16 v[%d:%d], v9 offset:%d" % (74 + 4 * n, 75 + 4 * n, n * 1024 + 128))
A("s_waitcnt lgkmcnt(4)")
A("v_mfma_f32_16x16x32_bf16 v[12:15], v[64:67], v[80:83], 0")
A("v_mfma_f32_16x16x32_bf16 v[12:15], v[68:71], v[84:87], v[12:15]")
A("s_waitcnt lgkmcnt(0)")
A("v_mfma_f32_16x16x32_bf16 v[16:19], v[72:75], v[80:83], 0")
A("v_mfma_f32_16x16x32_bf16 v[16:19], v[76:79], v[84:87], v[16:19]")
C("partials -> L_QP/L_GP + wave*512 + (g*8 + i)*16 for i<8")
A("v_lshl_add_u32 v8, v%d, 3, v%d" % (vG, vI))
A("v_lshlrev_b32 v8, 4, v8")
A("v_add_u32 v8, %d, v8" % L_QP)
A("s_lshl_b32 s92, s%d, 9" % sW)
A("v_add_u32 v9, s92, v8")
A("v_cmp_gt_u32 vcc, 8, v%d" % vI)
A("s_and_saveexec_b64 s[%d:%d], vcc" % (sEX, sEX + 1))
A("s_nop 7")
A("ds_write_b128 v9, v[12:15]")
A("v_subrev_u32 v9, %d, v9" % (L_QP - L_GP))
A("ds_write_b128 v9, v[16:19]")
A("s_mov_b64 exec, s[%d:%d]" % (sEX, sEX + 1))
A("s_waitcnt lgkmcnt(0)")
A("s_barrier")
A("s_cmp_gt_u32 s%d, 1" % sW)
A("s_cbranch_scc1 L_p3")
C("wave 0 reduces q, wave 1 reduces gate/up")
A("s_mul_i32 s92, s%d, %d" % (sW, L_QP - L_GP))
A("v_subrev_u32 v8, s92, v8")
A("v_cmp_gt_u32 vcc, 8, v%d" % vI)
A("s_and_saveexec_b64 s[%d:%d], vcc" % (sEX, sEX + 1))
for v in range(8):
    A("ds_read_b128 v[%d:%d], v8 offset:%d" % (64 + 4 * v, 67 + 4 * v, v * 512))
A("s_cmp_eq_u32 s%d, 1" % sW)
A("s_cbranch_scc1 L_p2g")
C("q: addr = QG + b*16384 + cb*64 + g*16")
A("v_lshlrev_b32 v8, 14, v%d" % vI)
A("s_lshl_b32 s92, s%d, 5" % sx)
A("s_add_u32 s92, s92, s%d" % sy)
A("s_lshl_b32 s92, s92, 6")
A("s_add_u32 s92, s92, %d" % QG)
A("s_branch L_p2j")
L("L_p2g")
C("gu: addr = HG + (mat*8 + b)*7168 + sx*896 + ti*64 + g*16 ; skip if sy>=28")
A("v_mul_u32_u24 v8, 7168, v%d" % vI)
A("s_mul_i32 s92, s%d, %d" % (sMAT, 8 * 7168))
A("s_mul_i32 s93, s%d, 896" % sx)
A("s_add_u32 s92, s92, s93")
A("s_lshl_b32 s93, s90, 6")
A("s_add_u32 s92, s92, s93")
A("s_add_u32 s92, s92, %d" % HG)
A("s_cmp_lt_u32 s%d, 28" % sy)
A("s_cbranch_scc1 L_p2j")
A("s_waitcnt lgkmcnt(0)")
A("s_mov_b64 exec, s[%d:%d]" % (sEX, sEX + 1))
A("s_branch L_p3")
L("L_p2j")
A("v_lshl_add_u32 v8, v%d, 4, v8" % vG)
A("s_waitcnt lgkmcnt(0)")
for v in range(1, 8):
    for r in range(4):
        A("v_add_f32 v%d, v%d, v%d" % (64 + r, 64 + r, 64 + 4 * v + r))
A("v_cvt_pk_bf16_f32 v16, v64, v65")
A("v_cvt_pk_bf16_f32 v18, v66, v67")
A("v_mov_b32 v17, v%d" % vTAG)
A("v_mov_b32 v19, v%d" % vTAG)
A("buffer_store_dwordx4 v[16:19], v8, %s, s92 offen sc1" % srd(sWS))
A("s_mov_b64 exec, s[%d:%d]" % (sEX, sEX + 1))

L("L_p3")
STAMP()
kloads(KE, 8)
for e in range(8):
    r = 64 + e * 4
    A("buffer_load_dwordx4 v[%d:%d], v30, %s, s%d offen offset:%d%s" % (r, r + 3, srd(sV), sKVOFF, e * 256, NT))
def tile_loads(tag):
    A("s_cmp_gt_u32 s%d, 4" % sRL)
    A("s_cbranch_scc1 L_tx%s" % tag)
    A("s_cmp_eq_u32 s%d, 4" % sRL)
    A("s_cbranch_scc1 L_td%s" % tag)
    C("wo column tile: soff = (128j + 32q)*1024 + ns*128 + wave*32 ; LDS L_WO + wave*4096 + q*1024")
    A("s_lshl_b32 s92, s%d, 17" % sJ)
    A("s_lshl_b32 s93, s%d, 7" % sNS)
    A("s_add_u32 s92, s92, s93")
    A("s_lshl_b32 s93, s%d, 5" % sRL)
    A("s_add_u32 s92, s92, s93")
    A("s_lshl_b32 s93, s%d, 12" % sRL)
    A("s_add_u32 s93, s93, %d" % L_WO)
    for q in range(4):
        A("s_mov_b32 m0, s93")
        A("s_add_u32 s93, s93, 1024")
        A("buffer_load_dwordx4 v28, %s, s92 offen%s lds" % (srd(sWO), NTW))
        A("s_add_u32 s92, s92, 32768")
    A("s_branch L_tx%s" % tag)
    L("L_td%s" % tag)
    C("wd tile: soff = (224kg + 32q)*1024 + ct*32")
    A("s_mul_i32 s92, s%d, %d" % (sx, 224 * 1024))
    A("s_lshl_b32 s93, s%d, 5" % sy)
    A("s_add_u32 s92, s92, s93")
    A("s_mov_b32 s93, %d" % L_WD)
    for q in range(7):
        A("s_mov_b32 m0, s93")
        A("s_add_u32 s93, s93, 1024")
        A("buffer_load_dwordx4 v28, %s, s92 offen%s lds" % (srd(sWD), NTW))
        A("s_add_u32 s92, s92, 32768")
    L("L_tx%s" % tag)
if not opt["tdefer"]:
    tile_loads("a")
L("L_p3x")
STAMP()
A("s_cmp_lg_u32 s%d, %d" % (sW, opt["qpw"]))
A("s_cbranch_scc1 L_qf")
C("q poll addr = QG + b*16384 + hkv*2048 + l*32")
A("s_lshl_b32 s92, s%d, 14" % sB)
A("s_lshl_b32 s93, s%d, 11" % sx)
A("s_add_u32 s92, s92, s93")
A("s_add_u32 s92, s92, %d" % QG)
A("v_lshlrev_b32 v8, 5, v%d" % vLANE)
L("L_qretry")
A("buffer_load_dwordx4 v[12:15], v8, %s, s92 offen sc1" % srd(sWS))
A("buffer_load_dwordx4 v[16:19], v8, %s, s92 offen offset:16 sc1" % srd(sWS))
A("s_waitcnt vmcnt(0)")
tagcheck([13, 15, 17, 19], 20, 21, "L_qretry")
A("v_mov_b32 v20, v12")
A("v_mov_b32 v21, v14")
A("v_mov_b32 v22, v16")
A("v_mov_b32 v23, v18")
A("v_mov_b32 v9, 1")
A("v_add_u32 v8, %d, v6" % L_Q)
A("ds_write_b128 v8, v[20:23]")
A("s_waitcnt lgkmcnt(0)")
A("ds_write_b32 v29, v9")
C("wait for q flag in LDS")
L("L_qf")
A("ds_read_b32 v12, v29")
A("s_waitcnt lgkmcnt(0)")
A("v_readfirstlane_b32 s92, v12")
A("s_add_u32 s%d, s%d, 1" % (sSPIN, sSPIN))
A("s_cmp_eq_u32 s92, 1")
A("s_cbranch_scc1 L_qf_ok")
A("s_cmp_lt_u32 s%d, %d" % (sSPIN, opt["spin"] * 16))
A("s_cbranch_scc1 L_qf")
L("L_qf_ok")
A("s_mov_b32 s%d, 0" % sSPIN)
STAMP()

C("P5")
A("v_and_b32 v9, 3, v%d" % vI)
A("v_lshlrev_b32 v9, 8, v9")
A("v_lshl_add_u32 v9, v%d, 4, v9" % vG)
A("v_add_u32 v9, %d, v9" % L_Q)
for t in range(4):
    A("ds_read_b128 v[%d:%d], v9 offset:%d" % (96 + 4 * t, 99 + 4 * t, t * 64))
if opt["tdefer"]:
    A("s_waitcnt vmcnt(8) lgkmcnt(0)")
else:
    waitv(8)
    A("s_waitcnt lgkmcnt(0)")
for T in range(2):
    for t in range(4):
        r = 32 + (T * 4 + t) * 4
        acc = 112 + 4 * T
        c = "0" if t == 0 else "v[%d:%d]" % (acc, acc + 3)
        A("v_mfma_f32_16x16x32_bf16 v[%d:%d], v[%d:%d], v[%d:%d], %s" % (acc, acc + 3, r, r + 3, 96 + 4 * t, 99 + 4 * t, c))
A("s_nop 7")
A("s_nop 1")
for k in range(4):
    A("v_cvt_pk_bf16_f32 v%d, v%d, v%d" % (20 + k, 112 + 2 * k, 113 + 2 * k))
for k in range(4):
    unpack(20 + k, 12 + 2 * k, 13 + 2 * k)
for k in range(8):
    A("v_mul_f32 v%d, s%d, v%d" % (12 + k, sSCALE, 12 + k))
for k in range(4):
    A("v_cvt_pk_bf16_f32 v%d, v%d, v%d" % (20 + k, 12 + 2 * k, 13 + 2 * k))
for k in range(4):
    unpack(20 + k, 12 + 2 * k, 13 + 2 * k)
A("v_max3_f32 v20, v12, v13, v14")
A("v_max3_f32 v20, v20, v15, v16")
A("v_max3_f32 v20, v20, v17, v18")
A("v_max_f32 v20, v20, v19")
crossrow(20, 21, "v_max_f32")
for k in range(8):
    A("v_sub_f32 v%d, v%d, v20" % (12 + k, 12 + k))
for k in range(8):
    A("v_mul_f32 v%d, s%d, v%d" % (12 + k, sLOG2E, 12 + k))
for k in range(8):
    A("v_exp_f32 v%d, v%d" % (12 + k, 12 + k))
A("s_nop 0")
A("v_add_f32 v22, v12, v13")
A("v_add_f32 v23, v14, v15")
A("v_add_f32 v22, v22, v16")
A("v_add_f32 v23, v23, v17")
A("v_add_f32 v22, v22, v18")
A("v_add_f32 v23, v23, v19")
A("v_add_f32 v22, v22, v23")
crossrow(22, 21, "v_add_f32")
for k in range(4):
    A("v_cvt_pk_bf16_f32 v%d, v%d, v%d" % (24 + k, 12 + 2 * k, 13 + 2 * k))

C("P6")
C("LDS addr for partial O: L_OW + wave*2048 + i*512 + g*128 (+j*16)")
A("s_lshl_b32 s92, s%d, 11" % sW)
A("s_add_u32 s92, s92, %d" % L_OW)
A("v_lshlrev_b32 v9, 9, v%d" % vI)
A("v_lshl_add_u32 v9, v%d, 7, v9" % vG)
A("v_add_u32 v9, s92, v9")
A("s_lshl_b32 s92, s%d, 2" % sW)
A("s_add_u32 s92, s92, %d" % L_ML)
A("v_lshlrev_b32 v10, 5, v%d" % vI)
A("v_add_u32 v10, s92, v10")
STAMP()
if opt["tdefer"]:
    A("s_waitcnt vmcnt(0)")
else:
    waitv(0)
STAMP()
for j in range(8):
    w = j >> 1
    sel = sSELHI if (j & 1) else sSELLO
    for u in range(4):
        A("v_perm_b32 v%d, v%d, v%d, s%d" % (32 + 4 * j + u, 64 + 4 * (2 * u + 1) + w, 64 + 4 * (2 * u) + w, sel))
A("s_nop 1")
for j in range(8):
    A("v_mfma_f32_16x16x32_bf16 v[%d:%d], v[%d:%d], v[24:27], 0" % (64 + 4 * j, 67 + 4 * j, 32 + 4 * j, 35 + 4 * j))
A("v_cmp_gt_u32 vcc, 4, v%d" % vI)
A("s_and_saveexec_b64 s[%d:%d], vcc" % (sEX, sEX + 1))
A("ds_write_b32 v10, v20")
A("ds_write_b32 v10, v22 offset:128")
A("s_nop 7")
for j in range(8):
    A("ds_write_b128 v9, v[%d:%d] offset:%d" % (64 + 4 * j, 67 + 4 * j, j * 16))
A("s_mov_b64 exec, s[%d:%d]" % (sEX, sEX + 1))
if opt["tdefer"]:
    tile_loads("b")
A("s_waitcnt lgkmcnt(0)")
A("s_barrier")

C("P7")
A("s_cmp_ge_u32 s%d, 4" % sW)
A("s_cbranch_scc1 L_p8")
C("addr = L_OW + h*512 + (l>>4)*128 + (l&3)*32 + ((l>>2)&3)*4")
A("s_lshl_b32 s92, s%d, 9" % sW)
A("s_add_u32 s92, s92, %d" % L_OW)
A("v_lshlrev_b32 v9, 7, v%d" % vG)
A("v_and_b32 v10, 3, v%d" % vLANE)
A("v_lshl_add_u32 v9, v10, 5, v9")
A("v_bfe_u32 v10, v%d, 2, 2" % vLANE)
A("v_lshl_add_u32 v9, v10, 2, v9")
A("v_add_u32 v9, s92, v9")
A("s_lshl_b32 s92, s%d, 5" % sW)
A("s_add_u32 s92, s92, %d" % L_ML)
A("v_mov_b32 v10, s92")
A("ds_read_b128 v[32:35], v10")
A("ds_read_b128 v[36:39], v10 offset:16")
A("ds_read_b128 v[40:43], v10 offset:128")
A("ds_read_b128 v[44:47], v10 offset:144")
for v in range(5):
    A("ds_read_b32 v%d, v9 offset:%d" % (48 + 2 * v, v * 2048))
    A("ds_read_b32 v%d, v9 offset:%d" % (49 + 2 * v, v * 2048 + 16))
A("s_waitcnt lgkmcnt(10)")
for v in range(5, 8):
    pass
A("v_max3_f32 v12, v32, v33, v34")
A("v_max3_f32 v12, v12, v35, v36")
A("v_max3_f32 v12, v12, v37, v38")
A("v_max_f32 v12, v12, v39")
for v in range(8):
    A("v_sub_f32 v%d, v%d, v12" % (32 + v, 32 + v))
for v in range(8):
    A("v_mul_f32 v%d, s%d, v%d" % (32 + v, sLOG2E, 32 + v))
for v in range(8):
    A("v_exp_f32 v%d, v%d" % (32 + v, 32 + v))
A("s_waitcnt lgkmcnt(4)")
for v in range(5, 8):
    A("ds_read_b32 v%d, v9 offset:%d" % (48 + 2 * v, v * 2048))
    A("ds_read_b32 v%d, v9 offset:%d" % (49 + 2 * v, v * 2048 + 16))
A("v_mul_f32 v14, v32, v40")
for v in range(1, 8):
    A("v_fmac_f32 v14, v%d, v%d" % (32 + v, 40 + v))
A("s_waitcnt lgkmcnt(0)")
A("v_mul_f32 v16, v32, v48")
A("v_mul_f32 v18, v32, v49")
for v in range(1, 8):
    A("v_fmac_f32 v16, v%d, v%d" % (32 + v, 48 + 2 * v))
    A("v_fmac_f32 v18, v%d, v%d" % (32 + v, 49 + 2 * v))
A("v_mov_b32 v13, v%d" % vTAG)
A("v_mov_b32 v15, v%d" % vTAG)
A("v_mov_b32 v17, v%d" % vTAG)
A("v_mov_b32 v19, v%d" % vTAG)
C("slot = ((hkv*4+wave)*8 + b)*4 + c")
A("s_lshl_b32 s92, s%d, 2" % sx)
A("s_add_u32 s92, s92, s%d" % sW)
A("s_lshl_b32 s92, s92, 3")
A("s_add_u32 s92, s92, s%d" % sB)
A("s_lshl_b32 s92, s92, 2")
A("s_add_u32 s92, s92, s%d" % sCc)
A("s_lshl_b32 s93, s92, 10")
A("s_add_u32 s93, s93, %d" % OG)
A("s_lshl_b32 s92, s92, 4")
A("s_add_u32 s92, s92, %d" % MLG)
A("buffer_store_dwordx4 v[16:19], v6, %s, s93 offen sc1" % srd(sWS))
A("s_mov_b64 exec, 1")
A("buffer_store_dwordx4 v[12:15], v31, %s, s92 offen sc1" % srd(sWS))
A("s_mov_b64 exec, -1")

L("L_p8")
STAMP()
C("slot base = (j*8 + wave)*4")
A("s_lshl_b32 s92, s%d, 3" % sJ)
A("s_add_u32 s92, s92, s%d" % sW)
A("s_lshl_b32 s93, s92, 12")
A("s_add_u32 s93, s93, %d" % OG)
A("s_lshl_b32 s92, s92, 6")
A("s_add_u32 s92, s92, %d" % MLG)
A("s_mul_i32 s94, s%d, 7168" % sW)
A("s_mul_i32 s95, s%d, 896" % sx)
A("s_add_u32 s94, s94, s95")
A("s_add_u32 s94, s94, %d" % HG)
A("v_min_u32 v9, 55, v%d" % vLANE)
A("v_lshlrev_b32 v10, 4, v9")
A("v_add_u32 v11, %d, v10" % (8 * 7168))
def oload(c):
    A("buffer_load_dwordx4 v[%d:%d], v6, %s, s93 offen offset:%d sc1" % (32 + 4 * c, 35 + 4 * c, srd(sWS), c * 1024))
def hload():
    A("buffer_load_dwordx4 v[64:67], v10, %s, s94 offen sc1" % srd(sWS))
    A("buffer_load_dwordx4 v[68:71], v11, %s, s94 offen sc1" % srd(sWS))
A("v_and_b32 v18, 3, v%d" % vLANE)
A("v_lshlrev_b32 v18, 4, v18")
if opt["ptouch"]:
    C("pre-touch the pages used later on the critical path (results unused)")
    A("buffer_load_dword v80, v6, %s, s93 offen" % srd(sWS))
    A("s_cmp_gt_u32 s%d, 4" % sRL)
    A("s_cbranch_scc1 L_ptx")
    A("s_cmp_eq_u32 s%d, 4" % sRL)
    A("s_cbranch_scc1 L_pte")
    A("v_lshlrev_b32 v12, 17, v%d" % vI)
    A("s_lshl_b32 s90, s%d, 12" % sJ)
    A("s_add_u32 s90, s90, %d" % SG)
    A("buffer_load_dword v81, v12, %s, s90 offen" % srd(sWS))
    A("s_branch L_ptf")
    L("L_pte")
    A("v_lshlrev_b32 v12, 15, v%d" % vI)
    A("s_lshl_b32 s90, s%d, 12" % sx)
    A("s_add_u32 s90, s90, %d" % DG)
    A("buffer_load_dword v81, v12, %s, s90 offen" % srd(sWS))
    L("L_ptf")
    A("s_cmp_lg_u32 s%d, 0" % sW)
    A("s_cbranch_scc1 L_ptx")
    A("v_lshlrev_b32 v12, 12, v%d" % vLANE)
    A("v_min_u32 v12, %d, v12" % (31 * 4096))
    A("s_lshl_b32 s90, s%d, 17" % sx)
    A("s_add_u32 s90, s90, %d" % SG)
    A("buffer_load_dword v82, v12, %s, s90 offen" % srd(sWS))
    A("v_and_b32 v12, 7, v%d" % vLANE)
    A("v_lshlrev_b32 v12, 12, v12")
    A("s_lshl_b32 s90, s%d, 15" % sx)
    A("s_add_u32 s90, s90, %d" % DG)
    A("buffer_load_dword v83, v12, %s, s90 offen" % srd(sWS))
    L("L_ptx")
hload()
A("buffer_load_dwordx4 v[48:51], v18, %s, s92 offen sc1" % srd(sWS))
C("A-fragment preload for P9 (own tile)")
A("s_mov_b32 s95, 0")
A("s_mov_b32 s89, 0")
A("s_cmp_gt_u32 s%d, 4" % sRL)
A("s_cbranch_scc1 L_mchk")
A("v_lshlrev_b32 v8, 8, v%d" % vG)
A("v_lshl_add_u32 v8, v%d, 3, v8" % vI)
A("s_lshl_b32 s90, s%d, 12" % sRL)
A("s_add_u32 s90, s90, %d" % L_WO)
assert L_WO + 4 * 4096 == L_WD
A("v_add_u32 v8, s90, v8")
A("s_waitcnt vmcnt(3)")
for t in range(7):
    A("ds_read_b64_tr_b16 v[%d:%d], v8 offset:%d" % (96 + 4 * t, 97 + 4 * t, t * 1024))
    A("ds_read_b64_tr_b16 v[%d:%d], v8 offset:%d" % (98 + 4 * t, 99 + 4 * t, t * 1024 + 128))
L("L_mchk")
A("s_waitcnt vmcnt(0) lgkmcnt(0)")
A("v_xor_b32 v12, v49, v%d" % vTAG)
A("v_xor_b32 v13, v51, v%d" % vTAG)
A("v_or_b32 v12, v12, v13")
A("v_cmp_eq_u32 vcc, 0, v12")
A("s_and_b32 s90, vcc_lo, 15")
A("s_andn2_b32 s90, s90, s95")
A("s_or_b32 s95, s95, s90")
A("s_andn2_b32 s90, s90, s89")
for c in range(4):
    A("s_bitcmp0_b32 s90, %d" % c)
    A("s_cbranch_scc1 L_msk%d" % c)
    oload(c)
    L("L_msk%d" % c)
A("s_cmp_eq_u32 s95, 15")
A("s_cbranch_scc1 L_ochk")
A("s_add_u32 s%d, s%d, 1" % (sSPIN, sSPIN))
A("s_cmp_ge_u32 s%d, %d" % (sSPIN, opt["spin"]))
A("s_cbranch_scc1 L_ochk")
A("buffer_load_dwordx4 v[48:51], v18, %s, s92 offen sc1" % srd(sWS))
A("s_andn2_b32 s89, 15, s95")
A("s_bcnt1_i32_b32 s90, s89")
A("s_cmp_eq_u32 s90, %d" % (1 if opt["spec"] else 99))
A("s_cselect_b32 s89, s89, 0")
for c in range(4):
    A("s_bitcmp0_b32 s89, %d" % c)
    A("s_cbranch_scc1 L_ssk%d" % c)
    oload(c)
    L("L_ssk%d" % c)
A("s_branch L_mchk")
L("L_ochk")
A("s_waitcnt vmcnt(0)")
tg = [33, 35, 37, 39, 41, 43, 45, 47, 65, 67, 69, 71]
A("v_xor_b32 v12, v%d, v%d" % (tg[0], vTAG))
for t in tg[1:]:
    A("v_xor_b32 v13, v%d, v%d" % (t, vTAG))
    A("v_or_b32 v12, v12, v13")
A("v_cmp_ne_u32 vcc, 0, v12")
A("s_cbranch_vccz L_ook")
A("s_add_u32 s%d, s%d, 1" % (sSPIN, sSPIN))
A("s_cmp_ge_u32 s%d, %d" % (sSPIN, opt["spin"]))
A("s_cbranch_scc1 L_ook")
for c in range(4):
    oload(c)
hload()
A("s_branch L_ochk")
L("L_ook")
STAMP()
C("broadcast M_c, L_c from lanes 0..3")
for c in range(4):
    A("v_readlane_b32 s%d, v48, %d" % (8 + c, c))
    A("v_readlane_b32 s%d, v50, %d" % (12 + c, c))
A("s_nop 1")
for c in range(4):
    A("v_mov_b32 v%d, s%d" % (48 + 4 * c, 8 + c))
    A("v_mov_b32 v%d, s%d" % (50 + 4 * c, 12 + c))
A("v_max3_f32 v12, v48, v52, v56")
A("v_max_f32 v12, v12, v60")
for c in range(4):
    A("v_sub_f32 v%d, v%d, v12" % (48 + 4 * c, 48 + 4 * c))
for c in range(4):
    A("v_mul_f32 v%d, s%d, v%d" % (48 + 4 * c, sLOG2E, 48 + 4 * c))
for c in range(4):
    A("v_exp_f32 v%d, v%d" % (48 + 4 * c, 48 + 4 * c))
unpack(64, 72, 73)
unpack(66, 74, 75)
unpack(68, 76, 77)
unpack(70, 78, 79)
for r in range(4):
    A("v_mul_f32 v%d, v%d, v%d" % (72 + r, 72 + r, 76 + r))
A("v_cvt_pk_bf16_f32 v64, v72, v73")
A("v_cvt_pk_bf16_f32 v65, v74, v75")
A("v_mul_f32 v13, v48, v50")
A("v_mul_f32 v14, v48, v32")
A("v_mul_f32 v15, v48, v34")
for c in range(1, 4):
    A("v_fmac_f32 v13, v%d, v%d" % (48 + 4 * c, 50 + 4 * c))
    A("v_fmac_f32 v14, v%d, v%d" % (48 + 4 * c, 32 + 4 * c))
    A("v_fmac_f32 v15, v%d, v%d" % (48 + 4 * c, 34 + 4 * c))
A("v_rcp_f32 v16, v13")
A("s_mul_i32 s92, s%d, %d" % (sW, HS))
A("s_add_u32 s92, s92, %d" % L_HT)
A("v_lshlrev_b32 v9, 3, v9")
A("v_add_u32 v9, s92, v9")
A("ds_write_b64 v9, v[64:65]")
for e in (14, 15):
    A("v_mul_f32 v17, v%d, v16" % e)
    A("v_fma_f32 v18, -v17, v13, v%d" % e)
    A("v_fma_f32 v%d, v18, v16, v17" % e)
A("v_cvt_pk_bf16_f32 v14, v14, v15")
A("s_mul_i32 s92, s%d, %d" % (sW, OS))
A("s_add_u32 s92, s92, %d" % L_OT)
A("v_lshlrev_b32 v9, 2, v%d" % vLANE)
A("v_add_u32 v9, s92, v9")
A("ds_write_b32 v9, v14")
A("s_waitcnt lgkmcnt(0)")
A("s_barrier")

C("P9")
A("s_cmp_gt_u32 s%d, 4" % sRL)
A("s_cbranch_scc1 L_done")
A("v_and_b32 v9, 7, v%d" % vI)
A("s_cmp_eq_u32 s%d, 4" % sRL)
A("s_cbranch_scc1 L_p9e")
A("v_mul_u32_u24 v7, %d, v9" % OS)
A("v_lshl_add_u32 v7, v%d, 4, v7" % vG)
A("v_add_u32 v7, %d, v7" % L_OT)
def gemv_pre(nk):
    for t in range(nk):
        A("ds_read_b128 v[%d:%d], v7 offset:%d" % (64 + 4 * t, 67 + 4 * t, t * 64))
    for t in range(nk):
        A("s_waitcnt lgkmcnt(%d)" % (nk - 1 - t))
        c = "0" if t == 0 else "v[12:15]"
        A("v_mfma_f32_16x16x32_bf16 v[12:15], v[%d:%d], v[%d:%d], %s" % (96 + 4 * t, 99 + 4 * t, 64 + 4 * t, 67 + 4 * t, c))
    A("s_nop 7")
    A("s_nop 1")
gemv_pre(4)
C("addr: voff = i*131072 + g*32 ; soff = SG + j*4096 + (64ns+16ct)*8")
A("v_lshlrev_b32 v8, 17, v%d" % vI)
A("v_lshl_add_u32 v8, v%d, 4, v8" % vG)
A("s_lshl_b32 s92, s%d, 12" % sJ)
A("s_lshl_b32 s93, s%d, 9" % sNS)
A("s_add_u32 s92, s92, s93")
A("s_lshl_b32 s93, s%d, 7" % sRL)
A("s_add_u32 s92, s92, s93")
A("s_add_u32 s92, s92, %d" % SG)
A("s_branch L_p9pub")
L("L_p9e")
A("v_mul_u32_u24 v7, %d, v9" % HS)
A("v_lshl_add_u32 v7, v%d, 4, v7" % vG)
A("v_add_u32 v7, %d, v7" % L_HT)
gemv_pre(7)
C("addr: voff = i*32768 + g*32 ; soff = DG + kg*4096 + ct*128")
A("v_lshlrev_b32 v8, 15, v%d" % vI)
A("v_lshl_add_u32 v8, v%d, 4, v8" % vG)
A("s_lshl_b32 s92, s%d, 12" % sx)
A("s_lshl_b32 s93, s%d, 7" % sy)
A("s_add_u32 s92, s92, s93")
A("s_add_u32 s92, s92, %d" % DG)
L("L_p9pub")
A("v_mov_b32 v16, v12")
A("v_mov_b32 v17, v%d" % vTAG)
A("v_mov_b32 v18, v13")
A("v_mov_b32 v19, v%d" % vTAG)
A("v_mov_b32 v20, v14")
A("v_mov_b32 v21, v%d" % vTAG)
A("v_mov_b32 v22, v15")
A("v_mov_b32 v23, v%d" % vTAG)
A("v_cmp_gt_u32 vcc, 8, v%d" % vI)
A("s_and_saveexec_b64 s[%d:%d], vcc" % (sEX, sEX + 1))
A("buffer_store_dwordx4 v[16:19], v8, %s, s92 offen sc1" % srd(sWS))
A("buffer_store_dwordx4 v[20:23], v8, %s, s92 offen offset:64 sc1" % srd(sWS))
A("s_mov_b64 exec, s[%d:%d]" % (sEX, sEX + 1))

A("s_cmp_lg_u32 s%d, 0" % sW)
A("s_cbranch_scc1 L_done")
C("P10: voff = (l>>3)*4096 + (l&7)*16")
A("v_lshrrev_b32 v8, 3, v%d" % vLANE)
A("v_and_b32 v9, 7, v%d" % vLANE)
A("v_lshlrev_b32 v10, 4, v9")
A("v_lshl_add_u32 v8, v8, 12, v10")
A("s_lshl_b32 s93, s%d, 7" % sy)
A("s_lshl_b32 s92, s%d, 17" % sx)
A("s_add_u32 s92, s92, s93")
A("s_add_u32 s92, s92, %d" % SG)
A("s_add_u32 s8, s92, 32768")
A("s_add_u32 s9, s92, 65536")
A("s_add_u32 s10, s92, 98304")
A("s_lshl_b32 s11, s%d, 15" % sx)
A("s_add_u32 s11, s11, s93")
A("s_add_u32 s11, s11, %d" % DG)
STAMP()
L("L_fretry")
for k, sr in enumerate((92, 8, 9, 10, 11)):
    A("buffer_load_dwordx4 v[%d:%d], v8, %s, s%d offen sc1" % (32 + 4 * k, 35 + 4 * k, srd(sWS), sr))
A("s_waitcnt vmcnt(0)")
tagcheck([33 + 2 * k for k in range(10)], 16, 17, "L_fretry")
STAMP()
A("v_add_f32 v12, v32, v36")
A("v_add_f32 v13, v34, v38")
A("v_add_f32 v14, v40, v44")
A("v_add_f32 v15, v42, v46")
A("v_add_f32 v12, v12, v14")
A("v_add_f32 v13, v13, v15")
A("v_mov_b32 v14, v48")
A("v_mov_b32 v15, v50")
A("s_nop 1")
for r in range(4):
    A("v_add_f32_dpp v%d, v%d, v%d row_ror:8 row_mask:0xf bank_mask:0xf" % (12 + r, 12 + r, 12 + r))
for r in range(4):
    A("v_mov_b32 v%d, v%d" % (16 + r, 12 + r))
A("s_nop 1")
for r in range(4):
    A("v_permlane16_swap_b32 v%d, v%d" % (12 + r, 16 + r))
for r in range(4):
    A("v_add_f32 v%d, v%d, v%d" % (12 + r, 12 + r, 16 + r))
for r in range(4):
    A("v_mov_b32 v%d, v%d" % (16 + r, 12 + r))
A("s_nop 1")
for r in range(4):
    A("v_permlane32_swap_b32 v%d, v%d" % (12 + r, 16 + r))
for r in range(4):
    A("v_add_f32 v%d, v%d, v%d" % (12 + r, 12 + r, 16 + r))
C("v12,v13 = s pair ; v14,v15 = d pair")
A("v_cvt_pk_bf16_f32 v12, v12, v13")
A("v_cvt_pk_bf16_f32 v14, v14, v15")
unpack(12, 16, 17)
unpack(14, 18, 19)
unpack(vXF, 20, 21)
for e in range(2):
    A("v_mul_f32 v%d, s%d, v%d" % (22 + e, sLOG2E, 18 + e))
for e in range(2):
    A("v_exp_f32 v%d, -v%d" % (22 + e, 22 + e))
A("s_nop 0")
for e in range(2):
    A("v_add_f32 v%d, 1.0, v%d" % (22 + e, 22 + e))
for e in range(2):
    A("v_rcp_f32 v%d, v%d" % (24 + e, 22 + e))
A("s_nop 0")
for e in range(2):
    A("v_mul_f32 v12, v%d, v%d" % (18 + e, 24 + e))
    A("v_fma_f32 v13, -v12, v%d, v%d" % (22 + e, 18 + e))
    A("v_fma_f32 v%d, v13, v%d, v12" % (18 + e, 24 + e))
A("v_cvt_pk_bf16_f32 v12, v18, v19")
unpack(12, 18, 19)
for e in range(2):
    A("v_mul_f32 v%d, v%d, v%d" % (18 + e, 16 + e, 18 + e))
A("v_cvt_pk_bf16_f32 v12, v18, v19")
unpack(12, 18, 19)
for e in range(2):
    A("v_add_f32 v%d, v%d, v%d" % (18 + e, 20 + e, 18 + e))
A("v_cvt_pk_bf16_f32 v12, v18, v19")
A("v_and_b32 v27, 3, v%d" % vLANE)
A("v_lshlrev_b32 v27, 3, v27")
A("v_bfe_u32 v13, v%d, 2, 1" % vLANE)
A("v_lshl_add_u32 v27, v13, 2, v27")
A("s_mov_b64 exec, 0xff")
A("buffer_store_dword v12, v27, %s, s%d offen" % (srd(sOUT), sT2))
A("s_cmp_lg_u32 s2, 0")
A("s_cbranch_scc1 L_done")
A("s_mov_b64 exec, 1")
A("buffer_store_dword v%d, v31, %s, 0 offen sc1" % (vTAG, srd(sWS)))
L("L_done")
if opt["hold"]:
    A("s_add_u32 s98, s98, %d" % (opt["hold"] * 100))
    L("L_hold")
    A("s_memrealtime s[96:97]")
    A("s_waitcnt lgkmcnt(0)")
    A("s_sub_u32 s96, s96, s98")
    A("s_cmp_lt_i32 s96, 0")
    A("s_cbranch_scc1 L_hold")
if opt["stamps"]:
    A("s_mov_b64 exec, -1")
    A("v_writelane_b32 v128, s%d, 16" % sSPIN)
    if opt["dbg"]:
        A("s_memrealtime s[96:97]")
        A("s_waitcnt lgkmcnt(0)")
        A("v_writelane_b32 v128, s96, 14")
        A("v_readlane_b32 s96, v128, 0")
        A("s_not_b32 s96, s96")
        A("v_writelane_b32 v128, s96, 15")
        A("s_mov_b32 s4, s24")
        A("s_and_b32 s5, s25, 0xffff")
        A("s_mov_b32 s6, 256")
        A("s_mov_b32 s7, 0x00020000")
        A("v_lshlrev_b32 v9, 2, v%d" % vLANE)
        A("s_mov_b64 exec, 0xffff")
        A("buffer_atomic_umax v128, v9, s[4:7], 0 offen")
        A("s_endpgm")
    A("s_lshl_b32 s92, s2, 3")
    A("s_add_u32 s92, s92, s%d" % sW)
    A("s_lshl_b32 s92, s92, 7")
    A("s_add_u32 s92, s92, %d" % (4 << 20))
    A("v_lshlrev_b32 v9, 2, v%d" % vLANE)
    A("s_mov_b64 exec, 0xffffffff")
    A("buffer_store_dword v128, v9, %s, s92 offen" % srd(sWS))
L("L_end")
A("s_endpgm")
out.append('.section .rodata,"a"')
out.append(".p2align 6")
out.append(".amdhsa_kernel " + K)
out.append("  .amdhsa_next_free_vgpr %d" % (136 if opt["stamps"] else 128))
out.append("  .amdhsa_next_free_sgpr %d" % (100 if (opt["stamps"] or opt["hold"]) else 96))
out.append("  .amdhsa_accum_offset %d" % (136 if opt["stamps"] else 128))
out.append("  .amdhsa_group_segment_fixed_size 0")
out.append("  .amdhsa_kernarg_size 96")
out.append("  .amdhsa_user_sgpr_count 2")
out.append("  .amdhsa_user_sgpr_kernarg_segment_ptr 1")
out.append("  .amdhsa_system_sgpr_workgroup_id_x 1")
out.append(".end_amdhsa_kernel")
open(sys.argv[1], "w").write("\n".join(out) + "\n")
print("LDS", LDS_BYTES, "WS", WS_BYTES, "stamps", nstamp[0])
```

```python
import sys

NAME = "recurrent_scan__sliding_block_cached__glu_gated_bilinear__decode"
HEADER = open("cdna_kernels/%s.s.ref" % NAME).read().split("; @launch")[0]

opt = dict(
    kwait=4,
    nt=0,
    spin=1000000,
    sleep=0,
    stamps=0,
    ntw=0,
    exp=0,
    kearly=2,
    qpw=2,
    fpipe=3,
    fsleep=8,
    ldspad=0,
    rsh=0,
    dbg=0,
    perm=0,
    hold=0,
    spec=0,
    ptouch=0,
    tdefer=0,
    S=8,
    hmul=2,
    hadd=1,
    xmap=1,
    bar0=1,
)
for a in sys.argv[2:]:
    k, v = a.split("=")
    opt[k] = int(v)

GEN = 0
QG = 4096
HG = QG + 8 * 16384
OG = 262144
MLG = OG + 32 * 8 * 4 * 1024
SG = 1376256
DG = SG + 8 * 32 * 4096
CNT = DG + 8 * 8 * 4096
WS_BYTES = CNT + 64 * 128
assert HG + 16 * 7168 <= OG and MLG + 32 * 8 * 4 * 16 <= SG

L_WQ = 0
L_OW = 0
L_WG = 16384
L_WU = 24576
L_WO = 32768
L_WD = 49152
L_XN = 57344
XS = 1088
L_Q = L_XN + 8 * XS
L_HT = L_Q + 1024
HS = 528
L_OT = L_HT + 8 * HS
OS = 272
L_ML = L_OT + 8 * OS
L_FIN = L_ML + 256
L_FLAG = L_FIN + 320
L_QP = L_XN + 8 * XS + 1024 + 8 * HS + 8 * OS + 256 + 320 + 64
L_GP = L_HT
assert L_QP == L_FLAG + 64
LDS_BYTES = L_QP + 4096
LDS_BYTES = (LDS_BYTES + 63) // 64 * 64
if opt["ldspad"]:
    LDS_BYTES = opt["ldspad"]

out = []
def A(s): out.append("    " + s)
def L(s): out.append(s + ":")
def C(s): out.append("    ; " + s)

sX, sK, sV, sWQ, sWO, sWG, sWU, sWD, sOUT, sWS = [28 + 4 * i for i in range(10)]
def srd(r): return "s[%d:%d]" % (r, r + 3)
sW, sx, sy = 68, 69, 70
sSELLO, sSELHI, sSPIN = 80, 81, 82
sSCALE, sLOG2E = 83, 86
sEX = 84
sKVOFF, sT0, sT1, sT2, sT3 = 71, 72, 73, 74, 75
sJ, sNS, sB, sCc = 76, 77, 78, 79
sWOoff, sWDoff, sW6 = 87, 88, 89
sMAT = 87
sKG, sCT, sBF, sCB = 98, 99, 100, 101
sHKV, sGB, sCNT, sFIRST, sHAST = 3, 20, 21, 22, 23
S = opt["S"]
POOL = 4 * (8 - S)
assert S in (5, 6, 7, 8)
sRL = 88

vLANE, vI, vG, vTAG, vXF = 1, 2, 3, 4, 5
NT = " nt" if opt["nt"] else ""
NTW = " nt" if opt["ntw"] else ""

nstamp = [0]
def STAMP():
    if not opt["stamps"]:
        return
    A("s_memrealtime s[96:97]")
    A("s_waitcnt lgkmcnt(0)")
    A("v_writelane_b32 v128, s96, %d" % nstamp[0])
    nstamp[0] += 1

nlab = [0]
def waitv(base):
    n = nlab[0]; nlab[0] += 1
    A("s_cmp_gt_u32 s%d, 4" % sRL)
    A("s_cbranch_scc1 L_wv%d_a" % n)
    A("s_cmp_eq_u32 s%d, 4" % sRL)
    A("s_cbranch_scc1 L_wv%d_b" % n)
    A("s_waitcnt vmcnt(%d)" % (base + 4))
    A("s_branch L_wv%d_c" % n)
    L("L_wv%d_b" % n)
    A("s_waitcnt vmcnt(%d)" % (base + 7))
    A("s_branch L_wv%d_c" % n)
    L("L_wv%d_a" % n)
    A("s_waitcnt vmcnt(%d)" % base)
    L("L_wv%d_c" % n)

def allsum(x, t):
    for m in ("quad_perm:[1,0,3,2]", "quad_perm:[2,3,0,1]", "row_half_mirror", "row_mirror"):
        A("s_nop 1")
        A("v_add_f32_dpp v%d, v%d, v%d %s row_mask:0xf bank_mask:0xf" % (x, x, x, m))
    crossrow(x, t, "v_add_f32")

def crossrow(x, t, op):
    A("v_mov_b32 v%d, v%d" % (t, x))
    A("s_nop 1")
    A("v_permlane16_swap_b32 v%d, v%d" % (x, t))
    A("%s v%d, v%d, v%d" % (op, x, x, t))
    A("v_mov_b32 v%d, v%d" % (t, x))
    A("s_nop 1")
    A("v_permlane32_swap_b32 v%d, v%d" % (x, t))
    A("%s v%d, v%d, v%d" % (op, x, x, t))

def unpack(src, lo, hi):
    A("v_lshlrev_b32 v%d, 16, v%d" % (lo, src))
    A("v_and_b32 v%d, 0xffff0000, v%d" % (hi, src))

def tagcheck(tags, ta, tb, retry):
    assert len(tags) >= 2
    A("v_min_u32 v%d, v%d, v%d" % (ta, tags[0], tags[1]))
    A("v_max_u32 v%d, v%d, v%d" % (tb, tags[0], tags[1]))
    rest = tags[2:]
    while rest:
        if len(rest) >= 2:
            A("v_min3_u32 v%d, v%d, v%d, v%d" % (ta, ta, rest[0], rest[1]))
            A("v_max3_u32 v%d, v%d, v%d, v%d" % (tb, tb, rest[0], rest[1]))
            rest = rest[2:]
        else:
            A("v_min_u32 v%d, v%d, v%d" % (ta, ta, rest[0]))
            A("v_max_u32 v%d, v%d, v%d" % (tb, tb, rest[0]))
            rest = rest[1:]
    A("v_xor_b32 v%d, v%d, v%d" % (ta, ta, vTAG))
    A("v_xor_b32 v%d, v%d, v%d" % (tb, tb, vTAG))
    A("v_or_b32 v%d, v%d, v%d" % (ta, ta, tb))
    A("v_cmp_ne_u32 vcc, 0, v%d" % ta)
    A("s_cbranch_vccz %s_ok" % retry)
    A("s_add_u32 s%d, s%d, 1" % (sSPIN, sSPIN))
    A("s_cmp_lt_u32 s%d, %d" % (sSPIN, opt["spin"]))
    if opt["sleep"]:
        A("s_sleep %d" % opt["sleep"])
    A("s_cbranch_scc1 %s" % retry)
    L(retry + "_ok")

def gemv_tile(ks, abase, astep, ahalf, bbase, acc, bank0, bank1):
    if isinstance(ks, int):
        ks = list(range(ks))
    batches = [ks[s:s + 4] for s in range(0, len(ks), 4)]
    def issue(bi):
        for n, t in enumerate(batches[bi]):
            r = (bank1 if bi & 1 else bank0) + n * 8
            A("ds_read_b64_tr_b16 v[%d:%d], v%d offset:%d" % (r, r + 1, abase, t * astep))
            A("ds_read_b64_tr_b16 v[%d:%d], v%d offset:%d" % (r + 2, r + 3, abase, t * astep + ahalf))
            A("ds_read_b128 v[%d:%d], v%d offset:%d" % (r + 4, r + 7, bbase, t * 64))
    issue(0)
    first = True
    for bi in range(len(batches)):
        A("s_waitcnt lgkmcnt(0)")
        if bi + 1 < len(batches):
            issue(bi + 1)
        for n, t in enumerate(batches[bi]):
            r = (bank1 if bi & 1 else bank0) + n * 8
            c = "0" if first else "v[%d:%d]" % (acc, acc + 3)
            first = False
            A("v_mfma_f32_16x16x32_bf16 v[%d:%d], v[%d:%d], v[%d:%d], %s" % (acc, acc + 3, r, r + 3, r + 4, r + 7, c))
    A("s_nop 7")
    A("s_nop 1")

K = NAME + "_kernel"
out.append(HEADER.rstrip("\n"))
out.append("; @launch grid=(256,1,1) block=(512,1,1) lds=%d" % LDS_BYTES)
out.append('.amdgcn_target "amdgcn-amd-amdhsa--gfx950"')
out.append(".text")
out.append(".globl " + K)
out.append(".p2align 8")
out.append(".type %s,@function" % K)
L(K)
A("s_cmp_ge_u32 s2, 256")
A("s_cbranch_scc1 L_end")
if opt["stamps"]:
    A("v_mov_b32 v128, 0")
STAMP()
A("s_load_dwordx16 s[4:19], s[0:1], 0")
A("s_load_dwordx8 s[20:27], s[0:1], 64")
A("v_lshrrev_b32 v6, 6, v0")
A("v_and_b32 v%d, 63, v0" % vLANE)
A("v_and_b32 v%d, 15, v0" % vI)
A("v_bfe_u32 v%d, v0, 4, 2" % vG)
A("v_readfirstlane_b32 s%d, v6" % sW)
A("s_add_u32 s%d, s%d, %d" % (sRL, sW, opt["rsh"]))
A("s_and_b32 s%d, s%d, 7" % (sRL, sRL))
A("s_and_b32 s%d, s2, 7" % sx)
A("s_lshr_b32 s%d, s2, 3" % sy)
A("s_mov_b32 s%d, 0x05040100" % sSELLO)
A("s_mov_b32 s%d, 0x07060302" % sSELHI)
A("s_mov_b32 s%d, 0" % sSPIN)
A("s_mov_b32 s%d, 0x3db504f3" % sSCALE)
A("s_mov_b32 s%d, 0x3fb8aa3b" % sLOG2E)
if opt["xmap"]:
    C("roles (speed only): producer and consumer of hop2/hop3 on different XCDs when xcd = wg%8")
    A("s_and_b32 s92, s%d, 1" % sx)
    A("s_lshr_b32 s93, s%d, 1" % sx)
    C("attention: b=sy>>2, r2=sy&1, hi=(sy>>1)&1, hkv=((xh-2-r2)&3)+4hi, c=2r2+p")
    A("s_lshr_b32 s%d, s%d, 2" % (sB, sy))
    A("s_and_b32 s94, s%d, 1" % sy)
    A("s_sub_u32 s%d, s93, s94" % sHKV)
    A("s_add_u32 s%d, s%d, 2" % (sHKV, sHKV))
    A("s_and_b32 s%d, s%d, 3" % (sHKV, sHKV))
    A("s_lshl_b32 s%d, s94, 1" % sCc)
    A("s_add_u32 s%d, s%d, s92" % (sCc, sCc))
    A("s_bfe_u32 s94, s%d, 0x10001" % sy)
    A("s_lshl_b32 s94, s94, 2")
    A("s_add_u32 s%d, s%d, s94" % (sHKV, sHKV))
    C("o-proj: r=(sy>>3)&1, hi=sy>>4, hh=(sy>>1)&3, nlow=sy&1; hkv=((xh-r)&3)+4hi; j=4hkv+hh; ns=2(2r+nlow)+p")
    A("s_bfe_u32 s94, s%d, 0x10003" % sy)
    A("s_sub_u32 s%d, s93, s94" % sJ)
    A("s_and_b32 s%d, s%d, 3" % (sJ, sJ))
    A("s_lshr_b32 s95, s%d, 4" % sy)
    A("s_lshl_b32 s95, s95, 2")
    A("s_add_u32 s%d, s%d, s95" % (sJ, sJ))
    A("s_lshl_b32 s%d, s%d, 2" % (sJ, sJ))
    A("s_bfe_u32 s95, s%d, 0x20001" % sy)
    A("s_add_u32 s%d, s%d, s95" % (sJ, sJ))
    A("s_lshl_b32 s%d, s94, 1" % sNS)
    A("s_and_b32 s95, s%d, 1" % sy)
    A("s_add_u32 s%d, s%d, s95" % (sNS, sNS))
    A("s_lshl_b32 s%d, s%d, 1" % (sNS, sNS))
    A("s_add_u32 s%d, s%d, s92" % (sNS, sNS))
    C("E2: ct = 4(2xh+p) + (sy&3) = 4*sx + (sy&3), kg = sy>>2")
    A("s_lshl_b32 s%d, s%d, 2" % (sCT, sx))
    A("s_and_b32 s95, s%d, 3" % sy)
    A("s_add_u32 s%d, s%d, s95" % (sCT, sCT))
    A("s_lshr_b32 s%d, s%d, 2" % (sKG, sy))
    C("final: b_f = sy&7, colblk = 4(2xh+1-p) + (sy>>3) = 4*(sx^1) + (sy>>3)")
    A("s_and_b32 s%d, s%d, 7" % (sBF, sy))
    A("s_xor_b32 s%d, s%d, 1" % (sCB, sx))
    A("s_lshl_b32 s%d, s%d, 2" % (sCB, sCB))
    A("s_lshr_b32 s95, s%d, 3" % sy)
    A("s_add_u32 s%d, s%d, s95" % (sCB, sCB))
else:
    A("s_lshr_b32 s%d, s%d, 2" % (sB, sy))
    A("s_and_b32 s%d, s%d, 3" % (sCc, sy))
    A("s_mul_i32 s%d, s%d, %d" % (sHKV, sCc, opt["hmul"]))
    A("s_add_u32 s%d, s%d, %d" % (sHKV, sHKV, opt["hadd"]))
    A("s_add_u32 s%d, s%d, s%d" % (sHKV, sHKV, sx))
    A("s_and_b32 s%d, s%d, 7" % (sHKV, sHKV))
    A("s_lshl_b32 s%d, s%d, 2" % (sJ, sx))
    A("s_lshr_b32 s%d, s%d, 3" % (sT0, sy))
    A("s_add_u32 s%d, s%d, s%d" % (sJ, sJ, sT0))
    A("s_and_b32 s%d, s%d, 7" % (sNS, sy))
    A("s_mov_b32 s%d, s%d" % (sKG, sx))
    A("s_mov_b32 s%d, s%d" % (sCT, sy))
    A("s_mov_b32 s%d, s%d" % (sBF, sx))
    A("s_mov_b32 s%d, s%d" % (sCB, sy))
A("s_lshl_b32 s%d, s%d, 23" % (sKVOFF, sB))
A("s_lshl_b32 s%d, s%d, 20" % (sT0, sHKV))
A("s_add_u32 s%d, s%d, s%d" % (sKVOFF, sKVOFF, sT0))
A("s_add_u32 s89, s%d, %d" % (sKVOFF, 3072 * 256))
A("s_lshl_b32 s%d, s%d, 16" % (sKVOFF, sCc))
A("s_add_u32 s%d, s%d, s89" % (sKVOFF, sKVOFF))
A("s_lshl_b32 s%d, s%d, 13" % (sT0, sW))
A("s_add_u32 s%d, s%d, s%d" % (sKVOFF, sKVOFF, sT0))
C("per-lane offsets")
A("v_lshlrev_b32 v6, 4, v%d" % vLANE)
A("v_lshrrev_b32 v7, 1, v%d" % vLANE)
A("v_and_b32 v8, 1, v%d" % vLANE)
A("v_lshlrev_b32 v8, 4, v8")
A("v_lshl_add_u32 v9, v7, 13, v8")
A("v_lshl_add_u32 v28, v7, 10, v8")
A("v_mul_u32_u24 v10, 3584, v7")
A("v_add_u32 v10, v10, v8")
A("v_lshrrev_b32 v7, 3, v%d" % vLANE)
A("v_and_b32 v8, 7, v%d" % vLANE)
A("v_lshlrev_b32 v8, 4, v8")
A("v_mov_b32 v29, %d" % L_FLAG)
C("K voff = (8*(i>>2) + (i&3))*256 + g*16")
A("v_lshrrev_b32 v7, 2, v%d" % vI)
A("v_and_b32 v8, 3, v%d" % vI)
A("v_lshl_add_u32 v7, v7, 3, v8")
A("v_lshlrev_b32 v7, 8, v7")
A("v_lshl_add_u32 v11, v%d, 4, v7" % vG)
C("V voff = 8g*256 + i*16")
A("v_lshlrev_b32 v7, 11, v%d" % vG)
A("v_lshl_add_u32 v30, v%d, 4, v7" % vI)
A("v_mov_b32 v31, 0")
C("x for final: x[b_f=sx][16*sy + (l&15)]")
A("v_and_b32 v12, 3, v%d" % vLANE)
A("v_lshlrev_b32 v12, 3, v12")
A("v_bfe_u32 v13, v%d, 2, 1" % vLANE)
A("v_lshl_add_u32 v12, v13, 2, v12")
A("s_lshl_b32 s%d, s%d, 10" % (sT2, sBF))
A("s_lshl_b32 s%d, s%d, 5" % (sT0, sCB))
A("s_add_u32 s%d, s%d, s%d" % (sT2, sT2, sT0))
C("wq soffset = cb*32 + 2*wave*262144 ; cb = sx*32+sy")
A("s_lshl_b32 s%d, s%d, 5" % (sT0, sx))
A("s_add_u32 s%d, s%d, s%d" % (sT0, sT0, sy))
A("s_lshl_b32 s%d, s%d, 5" % (sT0, sT0))
A("s_lshl_b32 s%d, s%d, 19" % (sT1, sW))
A("s_add_u32 s%d, s%d, s%d" % (sT0, sT0, sT1))
C("gu tile: syc=min(sy,27); mat = syc>=14; ti = syc-14*mat; soff = 448*sx + 32*ti + 2*wave*32*3584")
A("s_min_u32 s%d, s%d, 27" % (sT3, sy))
A("s_cmp_ge_u32 s%d, 14" % sT3)
A("s_cselect_b32 s%d, 1, 0" % sMAT)
A("s_mul_i32 s%d, s%d, 14" % (sT1, sMAT))
A("s_sub_u32 s90, s%d, s%d" % (sT3, sT1))
A("s_lshl_b32 s%d, s90, 5" % sT3)
A("s_mul_i32 s%d, s%d, 448" % (sT1, sx))
A("s_add_u32 s%d, s%d, s%d" % (sT3, sT3, sT1))
A("s_mul_i32 s%d, s%d, %d" % (sT1, sW, 64 * 3584))
A("s_add_u32 s%d, s%d, s%d" % (sT3, sT3, sT1))
A("s_lshl_b32 s91, s%d, 10" % sW)
A("s_waitcnt lgkmcnt(0)")
def mksrd(r, p, nbytes):
    A("s_mov_b32 s%d, s%d" % (r, p))
    A("s_and_b32 s%d, s%d, 0xffff" % (r + 1, p + 1))
    A("s_mov_b32 s%d, %d" % (r + 2, nbytes))
    A("s_mov_b32 s%d, 0x00020000" % (r + 3))
mksrd(sWS, 26, (8 << 20) if opt["stamps"] else WS_BYTES)
mksrd(sX, 4, 8192)
mksrd(sWQ, 10, 512 * 4096 * 2)
STAMP()
C("first loads")
A("s_load_dword s95, s[26:27], 0")
C("ticket counter (hkv=sx, b=sy) zeroed by this q producer before its q publish")
A("s_cmp_gt_u32 s%d, 7" % sy)
A("s_cbranch_scc1 L_nz")
A("s_cmp_lg_u32 s%d, 0" % sW)
A("s_cbranch_scc1 L_nz")
A("s_lshl_b32 s92, s%d, 3" % sx)
A("s_add_u32 s92, s92, s%d" % sy)
A("s_lshl_b32 s92, s92, 7")
A("s_add_u32 s92, s92, %d" % CNT)
A("s_mov_b64 exec, 1")
A("buffer_store_dword v31, v31, %s, s92 offen sc1" % srd(sWS))
A("s_mov_b64 exec, -1")
L("L_nz")
A("buffer_load_dword v%d, v12, %s, s%d offen" % (vXF, srd(sX), sT2))
A("buffer_load_dwordx4 v[20:23], v6, %s, s91 offen" % srd(sX))
A("s_lshl_b32 s92, s91, 1")
A("s_add_u32 s92, s92, %d" % L_WQ)
A("s_mov_b32 m0, s92")
A("s_add_u32 s93, s%d, 262144" % sT0)
A("buffer_load_dwordx4 v9, %s, s%d offen%s lds" % (srd(sWQ), sT0, NTW))
A("s_add_u32 s92, s92, 1024")
A("s_mov_b32 m0, s92")
mksrd(sK, 6, 64 << 20)
A("buffer_load_dwordx4 v9, %s, s93 offen%s lds" % (srd(sWQ), NTW))
A("s_cmp_eq_u32 s%d, 0" % sMAT)
A("s_cselect_b32 s16, s16, s18")
A("s_cselect_b32 s17, s17, s19")
mksrd(sWG, 16, 512 * 1792 * 2)
A("s_lshl_b32 s92, s91, 1")
A("s_add_u32 s92, s92, %d" % L_WG)
A("s_mov_b32 m0, s92")
A("s_add_u32 s93, s%d, %d" % (sT3, 32 * 3584))
A("buffer_load_dwordx4 v10, %s, s%d offen%s lds" % (srd(sWG), sT3, NTW))
A("s_add_u32 s92, s92, 1024")
A("s_mov_b32 m0, s92")
A("s_nop 0")
A("buffer_load_dwordx4 v10, %s, s93 offen%s lds" % (srd(sWG), NTW))
if opt["bar0"]:
    A("s_barrier")
KE = opt["kearly"]
def kloads(lo, hi):
    for n in range(lo, hi):
        T, t = n >> 2, n & 3
        r = 32 + n * 4
        A("buffer_load_dwordx4 v[%d:%d], v11, %s, s%d offen offset:%d%s" % (r, r + 3, srd(sK), sKVOFF, T * 1024 + t * 64, NT))
kloads(0, KE)
mksrd(sV, 8, 64 << 20)
mksrd(sWO, 12, 4096 * 512 * 2)
mksrd(sWD, 20, 1792 * 512 * 2)
mksrd(sOUT, 22, 8192)
A("s_mov_b32 s%d, s89" % sGB)
A("s_lshl_b32 s%d, s%d, 3" % (sCNT, sHKV))
A("s_add_u32 s%d, s%d, s%d" % (sCNT, sCNT, sB))
A("s_lshl_b32 s%d, s%d, 7" % (sCNT, sCNT))
A("s_add_u32 s%d, s%d, %d" % (sCNT, sCNT, CNT))
A("s_mov_b32 s%d, 1" % sFIRST)

C("P1 layernorm")
A("s_waitcnt vmcnt(%d)" % (4 + KE))
STAMP()
A("s_waitcnt lgkmcnt(0)")
A("s_add_u32 s95, s95, 1")
A("v_mov_b32 v%d, s95" % vTAG)
for k in range(4):
    unpack(20 + k, 12 + 2 * k, 13 + 2 * k)
A("v_add_f32 v20, v12, v13")
A("v_add_f32 v21, v14, v15")
A("v_add_f32 v22, v16, v17")
A("v_add_f32 v23, v18, v19")
A("v_add_f32 v20, v20, v21")
A("v_add_f32 v22, v22, v23")
A("v_add_f32 v20, v20, v22")
allsum(20, 21)
A("v_mul_f32 v20, 0x3b000000, v20")
A("v_sub_f32 v21, v12, v20")
A("v_mul_f32 v22, v21, v21")
for k in range(1, 8):
    A("v_sub_f32 v21, v%d, v20" % (12 + k))
    A("v_fmac_f32 v22, v21, v21")
allsum(22, 21)
A("v_mul_f32 v22, 0x3b000000, v22")
A("v_cvt_pk_bf16_f32 v20, v20, v22")
A("v_and_b32 v22, 0xffff0000, v20")
A("v_lshlrev_b32 v20, 16, v20")
A("v_add_f32 v22, 0x3727c5ac, v22")
A("v_cvt_pk_bf16_f32 v22, v22, v22")
A("v_lshlrev_b32 v22, 16, v22")
A("v_sqrt_f32 v22, v22")
A("s_nop 0")
A("v_cvt_pk_bf16_f32 v22, v22, v22")
A("v_lshlrev_b32 v22, 16, v22")
A("v_rcp_f32 v23, v22")
for k in range(4):
    a, b = 12 + 2 * k, 13 + 2 * k
    A("v_sub_f32 v%d, v%d, v20" % (a, a))
    A("v_sub_f32 v%d, v%d, v20" % (b, b))
    A("v_cvt_pk_bf16_f32 v21, v%d, v%d" % (a, b))
    unpack(21, a, b)
    for e in (a, b):
        A("v_mul_f32 v21, v%d, v23" % e)
        A("v_fma_f32 v24, -v21, v22, v%d" % e)
        A("v_fma_f32 v%d, v24, v23, v21" % e)
    A("v_cvt_pk_bf16_f32 v%d, v%d, v%d" % (96 + k, a, b))
A("s_mul_i32 s92, s%d, %d" % (sW, XS))
A("s_add_u32 s92, s92, %d" % L_XN)
A("v_add_u32 v7, s92, v6")
A("ds_write_b128 v7, v[96:99]")
A("ds_write_b32 v29, v31")
A("ds_write_b32 v29, v31 offset:4")
A("s_waitcnt vmcnt(%d) lgkmcnt(0)" % KE)
STAMP()
A("s_barrier")
STAMP()

C("P2")
A("v_and_b32 v7, 7, v%d" % vI)
A("v_mul_u32_u24 v7, %d, v7" % XS)
A("v_lshl_add_u32 v7, v%d, 4, v7" % vG)
A("v_add_u32 v7, %d, v7" % L_XN)
A("s_lshl_b32 s92, s%d, 7" % sW)
A("v_add_u32 v16, s92, v7")
A("v_lshlrev_b32 v8, 8, v%d" % vG)
A("v_lshl_add_u32 v8, v%d, 3, v8" % vI)
A("s_lshl_b32 s92, s%d, 11" % sW)
A("s_add_u32 s92, s92, %d" % L_WQ)
A("v_add_u32 v8, s92, v8")
A("v_add_u32 v9, %d, v8" % (L_WG - L_WQ))
for n in range(2):
    A("ds_read_b64_tr_b16 v[%d:%d], v8 offset:%d" % (64 + 4 * n, 65 + 4 * n, n * 1024))
    A("ds_read_b64_tr_b16 v[%d:%d], v8 offset:%d" % (66 + 4 * n, 67 + 4 * n, n * 1024 + 128))
    A("ds_read_b128 v[%d:%d], v16 offset:%d" % (80 + 4 * n, 83 + 4 * n, n * 64))
for n in range(2):
    A("ds_read_b64_tr_b16 v[%d:%d], v9 offset:%d" % (72 + 4 * n, 73 + 4 * n, n * 1024))
    A("ds_read_b64_tr_b16 v[%d:%d], v9 offset:%d" % (74 + 4 * n, 75 + 4 * n, n * 1024 + 128))
A("s_waitcnt lgkmcnt(4)")
A("v_mfma_f32_16x16x32_bf16 v[12:15], v[64:67], v[80:83], 0")
A("v_mfma_f32_16x16x32_bf16 v[12:15], v[68:71], v[84:87], v[12:15]")
A("s_waitcnt lgkmcnt(0)")
A("v_mfma_f32_16x16x32_bf16 v[16:19], v[72:75], v[80:83], 0")
A("v_mfma_f32_16x16x32_bf16 v[16:19], v[76:79], v[84:87], v[16:19]")
C("partials -> L_QP/L_GP + wave*512 + (g*8 + i)*16 for i<8")
A("v_lshl_add_u32 v8, v%d, 3, v%d" % (vG, vI))
A("v_lshlrev_b32 v8, 4, v8")
A("v_add_u32 v8, %d, v8" % L_QP)
A("s_lshl_b32 s92, s%d, 9" % sW)
A("v_add_u32 v9, s92, v8")
A("v_cmp_gt_u32 vcc, 8, v%d" % vI)
A("s_and_saveexec_b64 s[%d:%d], vcc" % (sEX, sEX + 1))
A("s_nop 7")
A("ds_write_b128 v9, v[12:15]")
A("v_subrev_u32 v9, %d, v9" % (L_QP - L_GP))
A("ds_write_b128 v9, v[16:19]")
A("s_mov_b64 exec, s[%d:%d]" % (sEX, sEX + 1))
A("s_waitcnt lgkmcnt(0)")
A("s_barrier")
A("s_cmp_gt_u32 s%d, 1" % sW)
A("s_cbranch_scc1 L_p3")
C("wave 0 reduces q, wave 1 reduces gate/up")
A("s_mul_i32 s92, s%d, %d" % (sW, L_QP - L_GP))
A("v_subrev_u32 v8, s92, v8")
A("v_cmp_gt_u32 vcc, 8, v%d" % vI)
A("s_and_saveexec_b64 s[%d:%d], vcc" % (sEX, sEX + 1))
for v in range(8):
    A("ds_read_b128 v[%d:%d], v8 offset:%d" % (64 + 4 * v, 67 + 4 * v, v * 512))
A("s_cmp_eq_u32 s%d, 1" % sW)
A("s_cbranch_scc1 L_p2g")
C("q: addr = QG + b*16384 + cb*64 + g*16")
A("v_lshlrev_b32 v8, 14, v%d" % vI)
A("s_lshl_b32 s92, s%d, 5" % sx)
A("s_add_u32 s92, s92, s%d" % sy)
A("s_lshl_b32 s92, s92, 6")
A("s_add_u32 s92, s92, %d" % QG)
A("s_branch L_p2j")
L("L_p2g")
C("gu: addr = HG + (mat*8 + b)*7168 + sx*896 + ti*64 + g*16 ; skip if sy>=28")
A("v_mul_u32_u24 v8, 7168, v%d" % vI)
A("s_mul_i32 s92, s%d, %d" % (sMAT, 8 * 7168))
A("s_mul_i32 s93, s%d, 896" % sx)
A("s_add_u32 s92, s92, s93")
A("s_lshl_b32 s93, s90, 6")
A("s_add_u32 s92, s92, s93")
A("s_add_u32 s92, s92, %d" % HG)
A("s_cmp_lt_u32 s%d, 28" % sy)
A("s_cbranch_scc1 L_p2j")
A("s_waitcnt lgkmcnt(0)")
A("s_mov_b64 exec, s[%d:%d]" % (sEX, sEX + 1))
A("s_branch L_p3")
L("L_p2j")
A("v_lshl_add_u32 v8, v%d, 4, v8" % vG)
A("s_waitcnt lgkmcnt(0)")
for v in range(1, 8):
    for r in range(4):
        A("v_add_f32 v%d, v%d, v%d" % (64 + r, 64 + r, 64 + 4 * v + r))
A("v_cvt_pk_bf16_f32 v16, v64, v65")
A("v_cvt_pk_bf16_f32 v18, v66, v67")
A("v_mov_b32 v17, v%d" % vTAG)
A("v_mov_b32 v19, v%d" % vTAG)
A("buffer_store_dwordx4 v[16:19], v8, %s, s92 offen sc1" % srd(sWS))
A("s_mov_b64 exec, s[%d:%d]" % (sEX, sEX + 1))

L("L_p3")
STAMP()
def vloads():
    for e in range(8):
        r = 64 + e * 4
        A("buffer_load_dwordx4 v[%d:%d], v30, %s, s%d offen offset:%d%s" % (r, r + 3, srd(sV), sKVOFF, e * 256, NT))
A("s_cmp_ge_u32 s%d, %d" % (sW, S))
A("s_cbranch_scc1 L_p3x")
kloads(KE, 8)
vloads()
def tile_loads(tag):
    A("s_cmp_gt_u32 s%d, 4" % sRL)
    A("s_cbranch_scc1 L_tx%s" % tag)
    A("s_cmp_eq_u32 s%d, 4" % sRL)
    A("s_cbranch_scc1 L_td%s" % tag)
    C("wo column tile: soff = (128j + 32q)*1024 + ns*128 + wave*32 ; LDS L_WO + wave*4096 + q*1024")
    A("s_lshl_b32 s92, s%d, 17" % sJ)
    A("s_lshl_b32 s93, s%d, 7" % sNS)
    A("s_add_u32 s92, s92, s93")
    A("s_lshl_b32 s93, s%d, 5" % sRL)
    A("s_add_u32 s92, s92, s93")
    A("s_lshl_b32 s93, s%d, 12" % sRL)
    A("s_add_u32 s93, s93, %d" % L_WO)
    for q in range(4):
        A("s_mov_b32 m0, s93")
        A("s_add_u32 s93, s93, 1024")
        A("buffer_load_dwordx4 v28, %s, s92 offen%s lds" % (srd(sWO), NTW))
        A("s_add_u32 s92, s92, 32768")
    A("s_branch L_tx%s" % tag)
    L("L_td%s" % tag)
    C("wd tile: soff = (224kg + 32q)*1024 + ct*32")
    A("s_mul_i32 s92, s%d, %d" % (sKG, 224 * 1024))
    A("s_lshl_b32 s93, s%d, 5" % sCT)
    A("s_add_u32 s92, s92, s93")
    A("s_mov_b32 s93, %d" % L_WD)
    for q in range(7):
        A("s_mov_b32 m0, s93")
        A("s_add_u32 s93, s93, 1024")
        A("buffer_load_dwordx4 v28, %s, s92 offen%s lds" % (srd(sWD), NTW))
        A("s_add_u32 s92, s92, 32768")
    L("L_tx%s" % tag)
if not opt["tdefer"]:
    tile_loads("a")
L("L_p3x")
STAMP()
QPW = S if S < 8 else opt["qpw"]
A("s_cmp_gt_u32 s%d, %d" % (sW, S))
A("s_cbranch_scc1 L_b3")
A("s_cmp_lg_u32 s%d, %d" % (sW, QPW))
A("s_cbranch_scc1 L_qf")
C("q poll addr = QG + b*16384 + hkv*2048 + l*32")
A("s_lshl_b32 s92, s%d, 14" % sB)
A("s_lshl_b32 s93, s%d, 11" % sHKV)
A("s_add_u32 s92, s92, s93")
A("s_add_u32 s92, s92, %d" % QG)
A("v_lshlrev_b32 v8, 5, v%d" % vLANE)
L("L_qretry")
A("buffer_load_dwordx4 v[12:15], v8, %s, s92 offen sc1" % srd(sWS))
A("buffer_load_dwordx4 v[16:19], v8, %s, s92 offen offset:16 sc1" % srd(sWS))
A("s_waitcnt vmcnt(0)")
tagcheck([13, 15, 17, 19], 20, 21, "L_qretry")
A("v_mov_b32 v20, v12")
A("v_mov_b32 v21, v14")
A("v_mov_b32 v22, v16")
A("v_mov_b32 v23, v18")
A("v_mov_b32 v9, 1")
A("v_add_u32 v8, %d, v6" % L_Q)
A("ds_write_b128 v8, v[20:23]")
A("s_waitcnt lgkmcnt(0)")
A("ds_write_b32 v29, v9")
if S < 8:
    A("s_branch L_b3")
C("wait for q flag in LDS")
L("L_qf")
A("ds_read_b32 v12, v29")
A("s_waitcnt lgkmcnt(0)")
A("v_readfirstlane_b32 s92, v12")
A("s_add_u32 s%d, s%d, 1" % (sSPIN, sSPIN))
A("s_cmp_eq_u32 s92, 1")
A("s_cbranch_scc1 L_qf_ok")
A("s_cmp_lt_u32 s%d, %d" % (sSPIN, opt["spin"] * 16))
A("s_cbranch_scc1 L_qf")
L("L_qf_ok")
A("s_mov_b32 s%d, 0" % sSPIN)
STAMP()

C("P5")
A("v_and_b32 v9, 3, v%d" % vI)
A("v_lshlrev_b32 v9, 8, v9")
A("v_lshl_add_u32 v9, v%d, 4, v9" % vG)
A("v_add_u32 v9, %d, v9" % L_Q)
for t in range(4):
    A("ds_read_b128 v[%d:%d], v9 offset:%d" % (96 + 4 * t, 99 + 4 * t, t * 64))
waitv(8)
A("s_branch L_unit1")
L("L_unit")
A("s_waitcnt vmcnt(8)")
L("L_unit1")
C("ticket request unless the pool is known to be empty")
A("ds_read_b32 v12, v29 offset:4")
A("s_waitcnt lgkmcnt(0)")
A("v_readfirstlane_b32 s%d, v12" % sHAST)
A("v_mov_b32 v122, 1")
A("s_xor_b32 s%d, s%d, 1" % (sHAST, sHAST))
if S == 8:
    A("s_mov_b32 s%d, 0" % sHAST)
A("s_cmp_eq_u32 s%d, 0" % sHAST)
A("s_cbranch_scc1 L_notk")
A("s_mov_b64 exec, 1")
A("buffer_atomic_add v122, v31, %s, s%d offen sc0 sc1" % (srd(sWS), sCNT))
A("s_mov_b64 exec, -1")
L("L_notk")
for T in range(2):
    for t in range(4):
        r = 32 + (T * 4 + t) * 4
        acc = 112 + 4 * T
        c = "0" if t == 0 else "v[%d:%d]" % (acc, acc + 3)
        A("v_mfma_f32_16x16x32_bf16 v[%d:%d], v[%d:%d], v[%d:%d], %s" % (acc, acc + 3, r, r + 3, 96 + 4 * t, 99 + 4 * t, c))
A("s_nop 7")
A("s_nop 1")
for k in range(4):
    A("v_cvt_pk_bf16_f32 v%d, v%d, v%d" % (20 + k, 112 + 2 * k, 113 + 2 * k))
for k in range(4):
    unpack(20 + k, 12 + 2 * k, 13 + 2 * k)
for k in range(8):
    A("v_mul_f32 v%d, s%d, v%d" % (12 + k, sSCALE, 12 + k))
for k in range(4):
    A("v_cvt_pk_bf16_f32 v%d, v%d, v%d" % (20 + k, 12 + 2 * k, 13 + 2 * k))
for k in range(4):
    unpack(20 + k, 12 + 2 * k, 13 + 2 * k)
A("v_max3_f32 v20, v12, v13, v14")
A("v_max3_f32 v20, v20, v15, v16")
A("v_max3_f32 v20, v20, v17, v18")
A("v_max_f32 v20, v20, v19")
crossrow(20, 21, "v_max_f32")
for k in range(8):
    A("v_sub_f32 v%d, v%d, v20" % (12 + k, 12 + k))
for k in range(8):
    A("v_mul_f32 v%d, s%d, v%d" % (12 + k, sLOG2E, 12 + k))
for k in range(8):
    A("v_exp_f32 v%d, v%d" % (12 + k, 12 + k))
A("s_nop 0")
A("v_add_f32 v22, v12, v13")
A("v_add_f32 v23, v14, v15")
A("v_add_f32 v22, v22, v16")
A("v_add_f32 v23, v23, v17")
A("v_add_f32 v22, v22, v18")
A("v_add_f32 v23, v23, v19")
A("v_add_f32 v22, v22, v23")
crossrow(22, 21, "v_add_f32")
for k in range(4):
    A("v_cvt_pk_bf16_f32 v%d, v%d, v%d" % (24 + k, 12 + 2 * k, 13 + 2 * k))

C("P6")
C("LDS addr for partial O: L_OW + wave*2048 + i*512 + g*128 (+j*16)")
A("s_lshl_b32 s92, s%d, 11" % sW)
A("s_add_u32 s92, s92, %d" % L_OW)
A("v_lshlrev_b32 v9, 9, v%d" % vI)
A("v_lshl_add_u32 v9, v%d, 7, v9" % vG)
A("v_add_u32 v9, s92, v9")
A("s_lshl_b32 s92, s%d, 2" % sW)
A("s_add_u32 s92, s92, %d" % L_ML)
A("v_lshlrev_b32 v10, 5, v%d" % vI)
A("v_add_u32 v10, s92, v10")
STAMP()
A("s_waitcnt vmcnt(0)")
STAMP()
for j in range(8):
    w = j >> 1
    sel = sSELHI if (j & 1) else sSELLO
    for u in range(4):
        A("v_perm_b32 v%d, v%d, v%d, s%d" % (32 + 4 * j + u, 64 + 4 * (2 * u + 1) + w, 64 + 4 * (2 * u) + w, sel))
A("s_nop 1")
for j in range(8):
    A("v_mfma_f32_16x16x32_bf16 v[%d:%d], v[%d:%d], v[24:27], 0" % (64 + 4 * j, 67 + 4 * j, 32 + 4 * j, 35 + 4 * j))
A("v_cmp_gt_u32 vcc, 4, v%d" % vI)
A("s_cmp_eq_u32 s%d, 0" % sFIRST)
A("s_cbranch_scc1 L_merge")
A("v_mov_b32 v120, v20")
A("v_mov_b32 v121, v22")
A("s_and_saveexec_b64 s[%d:%d], vcc" % (sEX, sEX + 1))
A("s_nop 7")
A("s_branch L_wr")
L("L_merge")
C("online merge of this unit into the wave's running partial (kept in LDS)")
A("v_max_f32 v12, v120, v20")
A("v_sub_f32 v13, v120, v12")
A("v_sub_f32 v14, v20, v12")
A("v_mul_f32 v13, s%d, v13" % sLOG2E)
A("v_mul_f32 v14, s%d, v14" % sLOG2E)
A("v_exp_f32 v13, v13")
A("v_exp_f32 v14, v14")
A("v_mov_b32 v120, v12")
A("v_mul_f32 v121, v13, v121")
A("v_fmac_f32 v121, v14, v22")
A("s_and_saveexec_b64 s[%d:%d], vcc" % (sEX, sEX + 1))
A("s_nop 7")
for j in range(8):
    A("ds_read_b128 v[%d:%d], v9 offset:%d" % (32 + 4 * j, 35 + 4 * j, j * 16))
A("s_waitcnt lgkmcnt(0)")
for k in range(32):
    A("v_mul_f32 v%d, v14, v%d" % (64 + k, 64 + k))
    A("v_fmac_f32 v%d, v13, v%d" % (64 + k, 32 + k))
L("L_wr")
for j in range(8):
    A("ds_write_b128 v9, v[%d:%d] offset:%d" % (64 + 4 * j, 67 + 4 * j, j * 16))
A("ds_write_b32 v10, v120")
A("ds_write_b32 v10, v121 offset:128")
A("s_mov_b64 exec, s[%d:%d]" % (sEX, sEX + 1))
A("s_mov_b32 s%d, 0" % sFIRST)
A("s_cmp_eq_u32 s%d, 0" % sHAST)
A("s_cbranch_scc1 L_b3")
A("v_readfirstlane_b32 s92, v122")
A("s_cmp_ge_u32 s92, %d" % POOL)
A("s_cbranch_scc1 L_empty")
C("claimed unit = chunk t/(8-S), slot S + t%%(8-S)")
if S == 6:
    A("s_lshr_b32 s93, s92, 1")
    A("s_and_b32 s92, s92, 1")
elif S == 7:
    A("s_mov_b32 s93, s92")
    A("s_mov_b32 s92, 0")
elif S == 5:
    A("s_mul_i32 s93, s92, 86")
    A("s_lshr_b32 s93, s93, 8")
    A("s_mul_i32 s94, s93, 3")
    A("s_sub_u32 s92, s92, s94")
A("s_lshl_b32 s93, s93, 3")
A("s_add_u32 s92, s92, s93")
A("s_add_u32 s92, s92, %d" % S)
A("s_lshl_b32 s92, s92, 13")
A("s_add_u32 s%d, s%d, s92" % (sKVOFF, sGB))
A("s_waitcnt lgkmcnt(0)")
kloads(0, 8)
vloads()
A("s_branch L_unit")
L("L_empty")
A("v_mov_b32 v12, 1")
A("ds_write_b32 v29, v12 offset:4")
L("L_b3")
A("s_waitcnt lgkmcnt(0)")
A("s_barrier")

C("P7")
A("s_cmp_ge_u32 s%d, 4" % sW)
A("s_cbranch_scc1 L_p8")
C("addr = L_OW + h*512 + (l>>4)*128 + (l&3)*32 + ((l>>2)&3)*4")
A("s_lshl_b32 s92, s%d, 9" % sW)
A("s_add_u32 s92, s92, %d" % L_OW)
A("v_lshlrev_b32 v9, 7, v%d" % vG)
A("v_and_b32 v10, 3, v%d" % vLANE)
A("v_lshl_add_u32 v9, v10, 5, v9")
A("v_bfe_u32 v10, v%d, 2, 2" % vLANE)
A("v_lshl_add_u32 v9, v10, 2, v9")
A("v_add_u32 v9, s92, v9")
A("s_lshl_b32 s92, s%d, 5" % sW)
A("s_add_u32 s92, s92, %d" % L_ML)
A("v_mov_b32 v10, s92")
A("ds_read_b128 v[32:35], v10")
A("ds_read_b128 v[36:39], v10 offset:16")
A("ds_read_b128 v[40:43], v10 offset:128")
A("ds_read_b128 v[44:47], v10 offset:144")
for v in range(5):
    A("ds_read_b32 v%d, v9 offset:%d" % (48 + 2 * v, v * 2048))
    A("ds_read_b32 v%d, v9 offset:%d" % (49 + 2 * v, v * 2048 + 16))
A("s_waitcnt lgkmcnt(10)")
A("v_max3_f32 v12, v32, v33, v34")
A("v_max3_f32 v12, v12, v35, v36")
for v in range(5, S):
    A("v_max_f32 v12, v12, v%d" % (32 + v))
for v in range(S):
    A("v_sub_f32 v%d, v%d, v12" % (32 + v, 32 + v))
for v in range(S):
    A("v_mul_f32 v%d, s%d, v%d" % (32 + v, sLOG2E, 32 + v))
for v in range(S):
    A("v_exp_f32 v%d, v%d" % (32 + v, 32 + v))
A("s_waitcnt lgkmcnt(4)")
for v in range(5, S):
    A("ds_read_b32 v%d, v9 offset:%d" % (48 + 2 * v, v * 2048))
    A("ds_read_b32 v%d, v9 offset:%d" % (49 + 2 * v, v * 2048 + 16))
A("v_mul_f32 v14, v32, v40")
for v in range(1, S):
    A("v_fmac_f32 v14, v%d, v%d" % (32 + v, 40 + v))
A("s_waitcnt lgkmcnt(0)")
A("v_mul_f32 v16, v32, v48")
A("v_mul_f32 v18, v32, v49")
for v in range(1, S):
    A("v_fmac_f32 v16, v%d, v%d" % (32 + v, 48 + 2 * v))
    A("v_fmac_f32 v18, v%d, v%d" % (32 + v, 49 + 2 * v))
A("v_mov_b32 v13, v%d" % vTAG)
A("v_mov_b32 v15, v%d" % vTAG)
A("v_mov_b32 v17, v%d" % vTAG)
A("v_mov_b32 v19, v%d" % vTAG)
C("slot = ((hkv*4+wave)*8 + b)*4 + c")
A("s_lshl_b32 s92, s%d, 2" % sHKV)
A("s_add_u32 s92, s92, s%d" % sW)
A("s_lshl_b32 s92, s92, 3")
A("s_add_u32 s92, s92, s%d" % sB)
A("s_lshl_b32 s92, s92, 2")
A("s_add_u32 s92, s92, s%d" % sCc)
A("s_lshl_b32 s93, s92, 10")
A("s_add_u32 s93, s93, %d" % OG)
A("s_lshl_b32 s92, s92, 4")
A("s_add_u32 s92, s92, %d" % MLG)
A("buffer_store_dwordx4 v[16:19], v6, %s, s93 offen sc1" % srd(sWS))
A("s_mov_b64 exec, 1")
A("buffer_store_dwordx4 v[12:15], v31, %s, s92 offen sc1" % srd(sWS))
A("s_mov_b64 exec, -1")

L("L_p8")
STAMP()
C("slot base = (j*8 + wave)*4")
A("s_lshl_b32 s92, s%d, 3" % sJ)
A("s_add_u32 s92, s92, s%d" % sW)
A("s_lshl_b32 s93, s92, 12")
A("s_add_u32 s93, s93, %d" % OG)
A("s_lshl_b32 s92, s92, 6")
A("s_add_u32 s92, s92, %d" % MLG)
A("s_mul_i32 s94, s%d, 7168" % sW)
A("s_mul_i32 s95, s%d, 896" % sKG)
A("s_add_u32 s94, s94, s95")
A("s_add_u32 s94, s94, %d" % HG)
A("v_min_u32 v9, 55, v%d" % vLANE)
A("v_lshlrev_b32 v10, 4, v9")
A("v_add_u32 v11, %d, v10" % (8 * 7168))
def oload(c):
    A("buffer_load_dwordx4 v[%d:%d], v6, %s, s93 offen offset:%d sc1" % (32 + 4 * c, 35 + 4 * c, srd(sWS), c * 1024))
def hload():
    A("buffer_load_dwordx4 v[64:67], v10, %s, s94 offen sc1" % srd(sWS))
    A("buffer_load_dwordx4 v[68:71], v11, %s, s94 offen sc1" % srd(sWS))
A("v_and_b32 v18, 3, v%d" % vLANE)
A("v_lshlrev_b32 v18, 4, v18")
if opt["ptouch"]:
    C("pre-touch the pages used later on the critical path (results unused)")
    A("buffer_load_dword v80, v6, %s, s93 offen" % srd(sWS))
    A("s_cmp_gt_u32 s%d, 4" % sRL)
    A("s_cbranch_scc1 L_ptx")
    A("s_cmp_eq_u32 s%d, 4" % sRL)
    A("s_cbranch_scc1 L_pte")
    A("v_lshlrev_b32 v12, 17, v%d" % vI)
    A("s_lshl_b32 s90, s%d, 12" % sJ)
    A("s_add_u32 s90, s90, %d" % SG)
    A("buffer_load_dword v81, v12, %s, s90 offen" % srd(sWS))
    A("s_branch L_ptf")
    L("L_pte")
    A("v_lshlrev_b32 v12, 15, v%d" % vI)
    A("s_lshl_b32 s90, s%d, 12" % sx)
    A("s_add_u32 s90, s90, %d" % DG)
    A("buffer_load_dword v81, v12, %s, s90 offen" % srd(sWS))
    L("L_ptf")
    A("s_cmp_lg_u32 s%d, 0" % sW)
    A("s_cbranch_scc1 L_ptx")
    A("v_lshlrev_b32 v12, 12, v%d" % vLANE)
    A("v_min_u32 v12, %d, v12" % (31 * 4096))
    A("s_lshl_b32 s90, s%d, 17" % sx)
    A("s_add_u32 s90, s90, %d" % SG)
    A("buffer_load_dword v82, v12, %s, s90 offen" % srd(sWS))
    A("v_and_b32 v12, 7, v%d" % vLANE)
    A("v_lshlrev_b32 v12, 12, v12")
    A("s_lshl_b32 s90, s%d, 15" % sx)
    A("s_add_u32 s90, s90, %d" % DG)
    A("buffer_load_dword v83, v12, %s, s90 offen" % srd(sWS))
    L("L_ptx")
hload()
A("buffer_load_dwordx4 v[48:51], v18, %s, s92 offen sc1" % srd(sWS))
C("A-fragment preload for P9 (own tile)")
A("s_mov_b32 s95, 0")
A("s_mov_b32 s89, 0")
A("s_cmp_gt_u32 s%d, 4" % sRL)
A("s_cbranch_scc1 L_mchk")
A("v_lshlrev_b32 v8, 8, v%d" % vG)
A("v_lshl_add_u32 v8, v%d, 3, v8" % vI)
A("s_lshl_b32 s90, s%d, 12" % sRL)
A("s_add_u32 s90, s90, %d" % L_WO)
assert L_WO + 4 * 4096 == L_WD
A("v_add_u32 v8, s90, v8")
A("s_waitcnt vmcnt(3)")
for t in range(7):
    A("ds_read_b64_tr_b16 v[%d:%d], v8 offset:%d" % (96 + 4 * t, 97 + 4 * t, t * 1024))
    A("ds_read_b64_tr_b16 v[%d:%d], v8 offset:%d" % (98 + 4 * t, 99 + 4 * t, t * 1024 + 128))
L("L_mchk")
A("s_waitcnt vmcnt(0) lgkmcnt(0)")
A("v_xor_b32 v12, v49, v%d" % vTAG)
A("v_xor_b32 v13, v51, v%d" % vTAG)
A("v_or_b32 v12, v12, v13")
A("v_cmp_eq_u32 vcc, 0, v12")
A("s_and_b32 s90, vcc_lo, 15")
A("s_andn2_b32 s90, s90, s95")
A("s_or_b32 s95, s95, s90")
A("s_andn2_b32 s90, s90, s89")
for c in range(4):
    A("s_bitcmp0_b32 s90, %d" % c)
    A("s_cbranch_scc1 L_msk%d" % c)
    oload(c)
    L("L_msk%d" % c)
A("s_cmp_eq_u32 s95, 15")
A("s_cbranch_scc1 L_ochk")
A("s_add_u32 s%d, s%d, 1" % (sSPIN, sSPIN))
A("s_cmp_ge_u32 s%d, %d" % (sSPIN, opt["spin"]))
A("s_cbranch_scc1 L_ochk")
A("buffer_load_dwordx4 v[48:51], v18, %s, s92 offen sc1" % srd(sWS))
A("s_andn2_b32 s89, 15, s95")
A("s_bcnt1_i32_b32 s90, s89")
A("s_cmp_eq_u32 s90, %d" % (1 if opt["spec"] else 99))
A("s_cselect_b32 s89, s89, 0")
for c in range(4):
    A("s_bitcmp0_b32 s89, %d" % c)
    A("s_cbranch_scc1 L_ssk%d" % c)
    oload(c)
    L("L_ssk%d" % c)
A("s_branch L_mchk")
L("L_ochk")
A("s_waitcnt vmcnt(0)")
tg = [33, 35, 37, 39, 41, 43, 45, 47, 65, 67, 69, 71]
A("v_xor_b32 v12, v%d, v%d" % (tg[0], vTAG))
for t in tg[1:]:
    A("v_xor_b32 v13, v%d, v%d" % (t, vTAG))
    A("v_or_b32 v12, v12, v13")
A("v_cmp_ne_u32 vcc, 0, v12")
A("s_cbranch_vccz L_ook")
A("s_add_u32 s%d, s%d, 1" % (sSPIN, sSPIN))
A("s_cmp_ge_u32 s%d, %d" % (sSPIN, opt["spin"]))
A("s_cbranch_scc1 L_ook")
for c in range(4):
    oload(c)
hload()
A("s_branch L_ochk")
L("L_ook")
STAMP()
C("broadcast M_c, L_c from lanes 0..3")
for c in range(4):
    A("v_readlane_b32 s%d, v48, %d" % (8 + c, c))
    A("v_readlane_b32 s%d, v50, %d" % (12 + c, c))
A("s_nop 1")
for c in range(4):
    A("v_mov_b32 v%d, s%d" % (48 + 4 * c, 8 + c))
    A("v_mov_b32 v%d, s%d" % (50 + 4 * c, 12 + c))
A("v_max3_f32 v12, v48, v52, v56")
A("v_max_f32 v12, v12, v60")
for c in range(4):
    A("v_sub_f32 v%d, v%d, v12" % (48 + 4 * c, 48 + 4 * c))
for c in range(4):
    A("v_mul_f32 v%d, s%d, v%d" % (48 + 4 * c, sLOG2E, 48 + 4 * c))
for c in range(4):
    A("v_exp_f32 v%d, v%d" % (48 + 4 * c, 48 + 4 * c))
unpack(64, 72, 73)
unpack(66, 74, 75)
unpack(68, 76, 77)
unpack(70, 78, 79)
for r in range(4):
    A("v_mul_f32 v%d, v%d, v%d" % (72 + r, 72 + r, 76 + r))
A("v_cvt_pk_bf16_f32 v64, v72, v73")
A("v_cvt_pk_bf16_f32 v65, v74, v75")
A("v_mul_f32 v13, v48, v50")
A("v_mul_f32 v14, v48, v32")
A("v_mul_f32 v15, v48, v34")
for c in range(1, 4):
    A("v_fmac_f32 v13, v%d, v%d" % (48 + 4 * c, 50 + 4 * c))
    A("v_fmac_f32 v14, v%d, v%d" % (48 + 4 * c, 32 + 4 * c))
    A("v_fmac_f32 v15, v%d, v%d" % (48 + 4 * c, 34 + 4 * c))
A("v_rcp_f32 v16, v13")
A("s_mul_i32 s92, s%d, %d" % (sW, HS))
A("s_add_u32 s92, s92, %d" % L_HT)
A("v_lshlrev_b32 v9, 3, v9")
A("v_add_u32 v9, s92, v9")
A("ds_write_b64 v9, v[64:65]")
for e in (14, 15):
    A("v_mul_f32 v17, v%d, v16" % e)
    A("v_fma_f32 v18, -v17, v13, v%d" % e)
    A("v_fma_f32 v%d, v18, v16, v17" % e)
A("v_cvt_pk_bf16_f32 v14, v14, v15")
A("s_mul_i32 s92, s%d, %d" % (sW, OS))
A("s_add_u32 s92, s92, %d" % L_OT)
A("v_lshlrev_b32 v9, 2, v%d" % vLANE)
A("v_add_u32 v9, s92, v9")
A("ds_write_b32 v9, v14")
A("s_waitcnt lgkmcnt(0)")
A("s_barrier")

C("P9")
A("s_cmp_gt_u32 s%d, 4" % sRL)
A("s_cbranch_scc1 L_done")
A("v_and_b32 v9, 7, v%d" % vI)
A("s_cmp_eq_u32 s%d, 4" % sRL)
A("s_cbranch_scc1 L_p9e")
A("v_mul_u32_u24 v7, %d, v9" % OS)
A("v_lshl_add_u32 v7, v%d, 4, v7" % vG)
A("v_add_u32 v7, %d, v7" % L_OT)
def gemv_pre(nk):
    for t in range(nk):
        A("ds_read_b128 v[%d:%d], v7 offset:%d" % (64 + 4 * t, 67 + 4 * t, t * 64))
    for t in range(nk):
        A("s_waitcnt lgkmcnt(%d)" % (nk - 1 - t))
        c = "0" if t == 0 else "v[12:15]"
        A("v_mfma_f32_16x16x32_bf16 v[12:15], v[%d:%d], v[%d:%d], %s" % (96 + 4 * t, 99 + 4 * t, 64 + 4 * t, 67 + 4 * t, c))
    A("s_nop 7")
    A("s_nop 1")
gemv_pre(4)
C("addr: voff = i*131072 + g*32 ; soff = SG + j*4096 + (64ns+16ct)*8")
A("v_lshlrev_b32 v8, 17, v%d" % vI)
A("v_lshl_add_u32 v8, v%d, 4, v8" % vG)
A("s_lshl_b32 s92, s%d, 12" % sJ)
A("s_lshl_b32 s93, s%d, 9" % sNS)
A("s_add_u32 s92, s92, s93")
A("s_lshl_b32 s93, s%d, 7" % sRL)
A("s_add_u32 s92, s92, s93")
A("s_add_u32 s92, s92, %d" % SG)
A("s_branch L_p9pub")
L("L_p9e")
A("v_mul_u32_u24 v7, %d, v9" % HS)
A("v_lshl_add_u32 v7, v%d, 4, v7" % vG)
A("v_add_u32 v7, %d, v7" % L_HT)
gemv_pre(7)
C("addr: voff = i*32768 + g*32 ; soff = DG + kg*4096 + ct*128")
A("v_lshlrev_b32 v8, 15, v%d" % vI)
A("v_lshl_add_u32 v8, v%d, 4, v8" % vG)
A("s_lshl_b32 s92, s%d, 12" % sKG)
A("s_lshl_b32 s93, s%d, 7" % sCT)
A("s_add_u32 s92, s92, s93")
A("s_add_u32 s92, s92, %d" % DG)
L("L_p9pub")
A("v_mov_b32 v16, v12")
A("v_mov_b32 v17, v%d" % vTAG)
A("v_mov_b32 v18, v13")
A("v_mov_b32 v19, v%d" % vTAG)
A("v_mov_b32 v20, v14")
A("v_mov_b32 v21, v%d" % vTAG)
A("v_mov_b32 v22, v15")
A("v_mov_b32 v23, v%d" % vTAG)
A("v_cmp_gt_u32 vcc, 8, v%d" % vI)
A("s_and_saveexec_b64 s[%d:%d], vcc" % (sEX, sEX + 1))
A("buffer_store_dwordx4 v[16:19], v8, %s, s92 offen sc1" % srd(sWS))
A("buffer_store_dwordx4 v[20:23], v8, %s, s92 offen offset:64 sc1" % srd(sWS))
A("s_mov_b64 exec, s[%d:%d]" % (sEX, sEX + 1))

A("s_cmp_lg_u32 s%d, 0" % sW)
A("s_cbranch_scc1 L_done")
C("P10: voff = (l>>3)*4096 + (l&7)*16")
A("v_lshrrev_b32 v8, 3, v%d" % vLANE)
A("v_and_b32 v9, 7, v%d" % vLANE)
A("v_lshlrev_b32 v10, 4, v9")
A("v_lshl_add_u32 v8, v8, 12, v10")
A("s_lshl_b32 s93, s%d, 7" % sCB)
A("s_lshl_b32 s92, s%d, 17" % sBF)
A("s_add_u32 s92, s92, s93")
A("s_add_u32 s92, s92, %d" % SG)
A("s_add_u32 s8, s92, 32768")
A("s_add_u32 s9, s92, 65536")
A("s_add_u32 s10, s92, 98304")
A("s_lshl_b32 s11, s%d, 15" % sBF)
A("s_add_u32 s11, s11, s93")
A("s_add_u32 s11, s11, %d" % DG)
STAMP()
L("L_fretry")
for k, sr in enumerate((92, 8, 9, 10, 11)):
    A("buffer_load_dwordx4 v[%d:%d], v8, %s, s%d offen sc1" % (32 + 4 * k, 35 + 4 * k, srd(sWS), sr))
A("s_waitcnt vmcnt(0)")
tagcheck([33 + 2 * k for k in range(10)], 16, 17, "L_fretry")
STAMP()
A("v_add_f32 v12, v32, v36")
A("v_add_f32 v13, v34, v38")
A("v_add_f32 v14, v40, v44")
A("v_add_f32 v15, v42, v46")
A("v_add_f32 v12, v12, v14")
A("v_add_f32 v13, v13, v15")
A("v_mov_b32 v14, v48")
A("v_mov_b32 v15, v50")
A("s_nop 1")
for r in range(4):
    A("v_add_f32_dpp v%d, v%d, v%d row_ror:8 row_mask:0xf bank_mask:0xf" % (12 + r, 12 + r, 12 + r))
for r in range(4):
    A("v_mov_b32 v%d, v%d" % (16 + r, 12 + r))
A("s_nop 1")
for r in range(4):
    A("v_permlane16_swap_b32 v%d, v%d" % (12 + r, 16 + r))
for r in range(4):
    A("v_add_f32 v%d, v%d, v%d" % (12 + r, 12 + r, 16 + r))
for r in range(4):
    A("v_mov_b32 v%d, v%d" % (16 + r, 12 + r))
A("s_nop 1")
for r in range(4):
    A("v_permlane32_swap_b32 v%d, v%d" % (12 + r, 16 + r))
for r in range(4):
    A("v_add_f32 v%d, v%d, v%d" % (12 + r, 12 + r, 16 + r))
C("v12,v13 = s pair ; v14,v15 = d pair")
A("v_cvt_pk_bf16_f32 v12, v12, v13")
A("v_cvt_pk_bf16_f32 v14, v14, v15")
unpack(12, 16, 17)
unpack(14, 18, 19)
unpack(vXF, 20, 21)
for e in range(2):
    A("v_mul_f32 v%d, s%d, v%d" % (22 + e, sLOG2E, 18 + e))
for e in range(2):
    A("v_exp_f32 v%d, -v%d" % (22 + e, 22 + e))
A("s_nop 0")
for e in range(2):
    A("v_add_f32 v%d, 1.0, v%d" % (22 + e, 22 + e))
for e in range(2):
    A("v_rcp_f32 v%d, v%d" % (24 + e, 22 + e))
A("s_nop 0")
for e in range(2):
    A("v_mul_f32 v12, v%d, v%d" % (18 + e, 24 + e))
    A("v_fma_f32 v13, -v12, v%d, v%d" % (22 + e, 18 + e))
    A("v_fma_f32 v%d, v13, v%d, v12" % (18 + e, 24 + e))
A("v_cvt_pk_bf16_f32 v12, v18, v19")
unpack(12, 18, 19)
for e in range(2):
    A("v_mul_f32 v%d, v%d, v%d" % (18 + e, 16 + e, 18 + e))
A("v_cvt_pk_bf16_f32 v12, v18, v19")
unpack(12, 18, 19)
for e in range(2):
    A("v_add_f32 v%d, v%d, v%d" % (18 + e, 20 + e, 18 + e))
A("v_cvt_pk_bf16_f32 v12, v18, v19")
A("v_and_b32 v27, 3, v%d" % vLANE)
A("v_lshlrev_b32 v27, 3, v27")
A("v_bfe_u32 v13, v%d, 2, 1" % vLANE)
A("v_lshl_add_u32 v27, v13, 2, v27")
A("s_mov_b64 exec, 0xff")
A("buffer_store_dword v12, v27, %s, s%d offen" % (srd(sOUT), sT2))
A("s_cmp_lg_u32 s2, 0")
A("s_cbranch_scc1 L_done")
A("s_mov_b64 exec, 1")
A("buffer_store_dword v%d, v31, %s, 0 offen sc1" % (vTAG, srd(sWS)))
L("L_done")
if opt["stamps"]:
    A("s_mov_b64 exec, -1")
    A("v_writelane_b32 v128, s%d, 16" % sSPIN)
    if opt["dbg"]:
        A("s_memrealtime s[96:97]")
        A("s_waitcnt lgkmcnt(0)")
        A("v_writelane_b32 v128, s96, 14")
        A("v_readlane_b32 s96, v128, 0")
        A("s_not_b32 s96, s96")
        A("v_writelane_b32 v128, s96, 15")
        A("s_mov_b32 s4, s24")
        A("s_and_b32 s5, s25, 0xffff")
        A("s_mov_b32 s6, 256")
        A("s_mov_b32 s7, 0x00020000")
        A("v_lshlrev_b32 v9, 2, v%d" % vLANE)
        A("s_mov_b64 exec, 0xffff")
        A("buffer_atomic_umax v128, v9, s[4:7], 0 offen")
        A("s_endpgm")
    A("s_lshl_b32 s92, s2, 3")
    A("s_add_u32 s92, s92, s%d" % sW)
    A("s_lshl_b32 s92, s92, 7")
    A("s_add_u32 s92, s92, %d" % (4 << 20))
    A("v_lshlrev_b32 v9, 2, v%d" % vLANE)
    A("s_mov_b64 exec, 0xffffffff")
    A("buffer_store_dword v128, v9, %s, s92 offen" % srd(sWS))
L("L_end")
A("s_endpgm")
out.append('.section .rodata,"a"')
out.append(".p2align 6")
out.append(".amdhsa_kernel " + K)
out.append("  .amdhsa_next_free_vgpr %d" % (136 if opt["stamps"] else 128))
out.append("  .amdhsa_next_free_sgpr 102")
out.append("  .amdhsa_accum_offset %d" % (136 if opt["stamps"] else 128))
out.append("  .amdhsa_group_segment_fixed_size 0")
out.append("  .amdhsa_kernarg_size 96")
out.append("  .amdhsa_user_sgpr_count 2")
out.append("  .amdhsa_user_sgpr_kernarg_segment_ptr 1")
out.append("  .amdhsa_system_sgpr_workgroup_id_x 1")
out.append(".end_amdhsa_kernel")
open(sys.argv[1], "w").write("\n".join(out) + "\n")
print("LDS", LDS_BYTES, "WS", WS_BYTES, "stamps", nstamp[0])
```

```python
import sys

NAME = "recurrent_scan__sliding_block_cached__glu_gated_bilinear__decode"
HEADER = open("cdna_kernels/%s.s.ref" % NAME).read().split("; @launch")[0]

opt = dict(
    kwait=4,
    nt=0,
    spin=1000000,
    sleep=0,
    stamps=0,
    ntw=0,
    exp=0,
    kearly=2,
    qpw=2,
    fpipe=3,
    fsleep=8,
    ldspad=0,
    rsh=0,
    dbg=0,
    perm=0,
    hold=0,
    spec=0,
    ptouch=0,
    tdefer=0,
    S=8,
    hmul=2,
    hadd=1,
    xmap=1,
    bar0=1,
)
for a in sys.argv[2:]:
    k, v = a.split("=")
    opt[k] = int(v)

GEN = 0
QG = 4096
HG = QG + 8 * 16384
OG = 262144
MLG = OG + 32 * 8 * 4 * 1024
SG = 1376256
DG = SG + 8 * 32 * 4096
CNT = DG + 8 * 8 * 4096
WS_BYTES = CNT + 64 * 128
assert HG + 16 * 7168 <= OG and MLG + 32 * 8 * 4 * 16 <= SG

L_WQ = 0
L_OW = 0
L_WG = 16384
L_WU = 24576
L_WO = 32768
L_WD = 49152
L_XN = 57344
XS = 1088
L_Q = L_XN + 8 * XS
L_HT = L_Q + 1024
HS = 528
L_OT = L_HT + 8 * HS
OS = 272
L_ML = L_OT + 8 * OS
L_FIN = L_ML + 256
L_FLAG = L_FIN + 320
L_QP = L_XN + 8 * XS + 1024 + 8 * HS + 8 * OS + 256 + 320 + 64
L_GP = L_HT
assert L_QP == L_FLAG + 64
LDS_BYTES = L_QP + 4096
LDS_BYTES = (LDS_BYTES + 63) // 64 * 64
if opt["ldspad"]:
    LDS_BYTES = opt["ldspad"]

out = []
def A(s): out.append("    " + s)
def L(s): out.append(s + ":")
def C(s): out.append("    ; " + s)

sX, sK, sV, sWQ, sWO, sWG, sWU, sWD, sOUT, sWS = [28 + 4 * i for i in range(10)]
def srd(r): return "s[%d:%d]" % (r, r + 3)
sW, sx, sy = 68, 69, 70
sSELLO, sSELHI, sSPIN = 80, 81, 82
sSCALE, sLOG2E = 83, 86
sEX = 84
sKVOFF, sT0, sT1, sT2, sT3 = 71, 72, 73, 74, 75
sJ, sNS, sB, sCc = 76, 77, 78, 79
sWOoff, sWDoff, sW6 = 87, 88, 89
sMAT = 87
sKG, sCT, sBF, sCB = 98, 99, 100, 101
sHKV, sGB, sCNT, sFIRST, sHAST = 3, 20, 21, 22, 23
S = opt["S"]
POOL = 4 * (8 - S)
assert S in (5, 6, 7, 8)
sRL = 88

vLANE, vI, vG, vTAG, vXF = 1, 2, 3, 4, 5
NT = " nt" if opt["nt"] else ""
NTW = " nt" if opt["ntw"] else ""

nstamp = [0]
def STAMP():
    if not opt["stamps"]:
        return
    A("s_memrealtime s[96:97]")
    A("s_waitcnt lgkmcnt(0)")
    A("v_writelane_b32 v128, s96, %d" % nstamp[0])
    nstamp[0] += 1

nlab = [0]
def waitv(base):
    n = nlab[0]; nlab[0] += 1
    A("s_cmp_gt_u32 s%d, 4" % sRL)
    A("s_cbranch_scc1 L_wv%d_a" % n)
    A("s_cmp_eq_u32 s%d, 4" % sRL)
    A("s_cbranch_scc1 L_wv%d_b" % n)
    A("s_waitcnt vmcnt(%d)" % (base + 4))
    A("s_branch L_wv%d_c" % n)
    L("L_wv%d_b" % n)
    A("s_waitcnt vmcnt(%d)" % (base + 7))
    A("s_branch L_wv%d_c" % n)
    L("L_wv%d_a" % n)
    A("s_waitcnt vmcnt(%d)" % base)
    L("L_wv%d_c" % n)

def allsum(x, t):
    for m in ("quad_perm:[1,0,3,2]", "quad_perm:[2,3,0,1]", "row_half_mirror", "row_mirror"):
        A("s_nop 1")
        A("v_add_f32_dpp v%d, v%d, v%d %s row_mask:0xf bank_mask:0xf" % (x, x, x, m))
    crossrow(x, t, "v_add_f32")

def crossrow(x, t, op):
    A("v_mov_b32 v%d, v%d" % (t, x))
    A("s_nop 1")
    A("v_permlane16_swap_b32 v%d, v%d" % (x, t))
    A("%s v%d, v%d, v%d" % (op, x, x, t))
    A("v_mov_b32 v%d, v%d" % (t, x))
    A("s_nop 1")
    A("v_permlane32_swap_b32 v%d, v%d" % (x, t))
    A("%s v%d, v%d, v%d" % (op, x, x, t))

def unpack(src, lo, hi):
    A("v_lshlrev_b32 v%d, 16, v%d" % (lo, src))
    A("v_and_b32 v%d, 0xffff0000, v%d" % (hi, src))

def tagcheck(tags, ta, tb, retry):
    assert len(tags) >= 2
    A("v_min_u32 v%d, v%d, v%d" % (ta, tags[0], tags[1]))
    A("v_max_u32 v%d, v%d, v%d" % (tb, tags[0], tags[1]))
    rest = tags[2:]
    while rest:
        if len(rest) >= 2:
            A("v_min3_u32 v%d, v%d, v%d, v%d" % (ta, ta, rest[0], rest[1]))
            A("v_max3_u32 v%d, v%d, v%d, v%d" % (tb, tb, rest[0], rest[1]))
            rest = rest[2:]
        else:
            A("v_min_u32 v%d, v%d, v%d" % (ta, ta, rest[0]))
            A("v_max_u32 v%d, v%d, v%d" % (tb, tb, rest[0]))
            rest = rest[1:]
    A("v_xor_b32 v%d, v%d, v%d" % (ta, ta, vTAG))
    A("v_xor_b32 v%d, v%d, v%d" % (tb, tb, vTAG))
    A("v_or_b32 v%d, v%d, v%d" % (ta, ta, tb))
    A("v_cmp_ne_u32 vcc, 0, v%d" % ta)
    A("s_cbranch_vccz %s_ok" % retry)
    A("s_add_u32 s%d, s%d, 1" % (sSPIN, sSPIN))
    A("s_cmp_lt_u32 s%d, %d" % (sSPIN, opt["spin"]))
    if opt["sleep"]:
        A("s_sleep %d" % opt["sleep"])
    A("s_cbranch_scc1 %s" % retry)
    L(retry + "_ok")

def gemv_tile(ks, abase, astep, ahalf, bbase, acc, bank0, bank1):
    if isinstance(ks, int):
        ks = list(range(ks))
    batches = [ks[s:s + 4] for s in range(0, len(ks), 4)]
    def issue(bi):
        for n, t in enumerate(batches[bi]):
            r = (bank1 if bi & 1 else bank0) + n * 8
            A("ds_read_b64_tr_b16 v[%d:%d], v%d offset:%d" % (r, r + 1, abase, t * astep))
            A("ds_read_b64_tr_b16 v[%d:%d], v%d offset:%d" % (r + 2, r + 3, abase, t * astep + ahalf))
            A("ds_read_b128 v[%d:%d], v%d offset:%d" % (r + 4, r + 7, bbase, t * 64))
    issue(0)
    first = True
    for bi in range(len(batches)):
        A("s_waitcnt lgkmcnt(0)")
        if bi + 1 < len(batches):
            issue(bi + 1)
        for n, t in enumerate(batches[bi]):
            r = (bank1 if bi & 1 else bank0) + n * 8
            c = "0" if first else "v[%d:%d]" % (acc, acc + 3)
            first = False
            A("v_mfma_f32_16x16x32_bf16 v[%d:%d], v[%d:%d], v[%d:%d], %s" % (acc, acc + 3, r, r + 3, r + 4, r + 7, c))
    A("s_nop 7")
    A("s_nop 1")

K = NAME + "_kernel"
out.append(HEADER.rstrip("\n"))
out.append("; @launch grid=(256,1,1) block=(512,1,1) lds=%d" % LDS_BYTES)
out.append('.amdgcn_target "amdgcn-amd-amdhsa--gfx950"')
out.append(".text")
out.append(".globl " + K)
out.append(".p2align 8")
out.append(".type %s,@function" % K)
L(K)
A("s_cmp_ge_u32 s2, 256")
A("s_cbranch_scc1 L_end")
if opt["stamps"]:
    A("v_mov_b32 v128, 0")
STAMP()
A("s_load_dwordx16 s[4:19], s[0:1], 0")
A("s_load_dwordx8 s[20:27], s[0:1], 64")
A("v_lshrrev_b32 v6, 6, v0")
A("v_and_b32 v%d, 63, v0" % vLANE)
A("v_and_b32 v%d, 15, v0" % vI)
A("v_bfe_u32 v%d, v0, 4, 2" % vG)
A("v_readfirstlane_b32 s%d, v6" % sW)
A("s_add_u32 s%d, s%d, %d" % (sRL, sW, opt["rsh"]))
A("s_and_b32 s%d, s%d, 7" % (sRL, sRL))
A("s_and_b32 s%d, s2, 7" % sx)
A("s_lshr_b32 s%d, s2, 3" % sy)
A("s_mov_b32 s%d, 0x05040100" % sSELLO)
A("s_mov_b32 s%d, 0x07060302" % sSELHI)
A("s_mov_b32 s%d, 0" % sSPIN)
A("s_mov_b32 s%d, 0x3db504f3" % sSCALE)
A("s_mov_b32 s%d, 0x3fb8aa3b" % sLOG2E)
if opt["xmap"]:
    C("roles (speed only): producer and consumer of hop2/hop3 on different XCDs when xcd = wg%8")
    A("s_and_b32 s92, s%d, 1" % sx)
    A("s_lshr_b32 s93, s%d, 1" % sx)
    C("attention: b=sy>>2, r2=sy&1, hi=(sy>>1)&1, hkv=((xh-2-r2)&3)+4hi, c=2r2+p")
    A("s_lshr_b32 s%d, s%d, 2" % (sB, sy))
    A("s_and_b32 s94, s%d, 1" % sy)
    A("s_sub_u32 s%d, s93, s94" % sHKV)
    A("s_add_u32 s%d, s%d, 2" % (sHKV, sHKV))
    A("s_and_b32 s%d, s%d, 3" % (sHKV, sHKV))
    A("s_lshl_b32 s%d, s94, 1" % sCc)
    A("s_add_u32 s%d, s%d, s92" % (sCc, sCc))
    A("s_bfe_u32 s94, s%d, 0x10001" % sy)
    A("s_lshl_b32 s94, s94, 2")
    A("s_add_u32 s%d, s%d, s94" % (sHKV, sHKV))
    C("o-proj: r=(sy>>3)&1, hi=sy>>4, hh=(sy>>1)&3, nlow=sy&1; hkv=((xh-r)&3)+4hi; j=4hkv+hh; ns=2(2r+nlow)+p")
    A("s_bfe_u32 s94, s%d, 0x10003" % sy)
    A("s_sub_u32 s%d, s93, s94" % sJ)
    A("s_and_b32 s%d, s%d, 3" % (sJ, sJ))
    A("s_lshr_b32 s95, s%d, 4" % sy)
    A("s_lshl_b32 s95, s95, 2")
    A("s_add_u32 s%d, s%d, s95" % (sJ, sJ))
    A("s_lshl_b32 s%d, s%d, 2" % (sJ, sJ))
    A("s_bfe_u32 s95, s%d, 0x20001" % sy)
    A("s_add_u32 s%d, s%d, s95" % (sJ, sJ))
    C("ns = 4r + 2p + nlow")
    A("s_lshl_b32 s%d, s94, 2" % sNS)
    A("s_lshl_b32 s95, s92, 1")
    A("s_add_u32 s%d, s%d, s95" % (sNS, sNS))
    A("s_and_b32 s95, s%d, 1" % sy)
    A("s_add_u32 s%d, s%d, s95" % (sNS, sNS))
    C("base ns from xh: 4*(xh>>1) + (xh&1)")
    A("s_lshr_b32 s94, s93, 1")
    A("s_lshl_b32 s94, s94, 2")
    A("s_and_b32 s95, s93, 1")
    A("s_add_u32 s94, s94, s95")
    C("E2: ns_e = base + 2p ; ct = 4 ns_e + (sy&3), kg = sy>>2")
    A("s_lshl_b32 s95, s92, 1")
    A("s_add_u32 s%d, s94, s95" % sCT)
    A("s_lshl_b32 s%d, s%d, 2" % (sCT, sCT))
    A("s_and_b32 s95, s%d, 3" % sy)
    A("s_add_u32 s%d, s%d, s95" % (sCT, sCT))
    A("s_lshr_b32 s%d, s%d, 2" % (sKG, sy))
    C("final: b_f = sy&7, ns_f = base + 2(1-p), colblk = 4 ns_f + (sy>>3)")
    A("s_and_b32 s%d, s%d, 7" % (sBF, sy))
    A("s_xor_b32 s95, s92, 1")
    A("s_lshl_b32 s95, s95, 1")
    A("s_add_u32 s%d, s94, s95" % sCB)
    A("s_lshl_b32 s%d, s%d, 2" % (sCB, sCB))
    A("s_lshr_b32 s95, s%d, 3" % sy)
    A("s_add_u32 s%d, s%d, s95" % (sCB, sCB))
else:
    A("s_lshr_b32 s%d, s%d, 2" % (sB, sy))
    A("s_and_b32 s%d, s%d, 3" % (sCc, sy))
    A("s_mul_i32 s%d, s%d, %d" % (sHKV, sCc, opt["hmul"]))
    A("s_add_u32 s%d, s%d, %d" % (sHKV, sHKV, opt["hadd"]))
    A("s_add_u32 s%d, s%d, s%d" % (sHKV, sHKV, sx))
    A("s_and_b32 s%d, s%d, 7" % (sHKV, sHKV))
    A("s_lshl_b32 s%d, s%d, 2" % (sJ, sx))
    A("s_lshr_b32 s%d, s%d, 3" % (sT0, sy))
    A("s_add_u32 s%d, s%d, s%d" % (sJ, sJ, sT0))
    A("s_and_b32 s%d, s%d, 7" % (sNS, sy))
    A("s_mov_b32 s%d, s%d" % (sKG, sx))
    A("s_mov_b32 s%d, s%d" % (sCT, sy))
    A("s_mov_b32 s%d, s%d" % (sBF, sx))
    A("s_mov_b32 s%d, s%d" % (sCB, sy))
A("s_lshl_b32 s%d, s%d, 23" % (sKVOFF, sB))
A("s_lshl_b32 s%d, s%d, 20" % (sT0, sHKV))
A("s_add_u32 s%d, s%d, s%d" % (sKVOFF, sKVOFF, sT0))
A("s_add_u32 s89, s%d, %d" % (sKVOFF, 3072 * 256))
A("s_lshl_b32 s%d, s%d, 16" % (sKVOFF, sCc))
A("s_add_u32 s%d, s%d, s89" % (sKVOFF, sKVOFF))
A("s_lshl_b32 s%d, s%d, 13" % (sT0, sW))
A("s_add_u32 s%d, s%d, s%d" % (sKVOFF, sKVOFF, sT0))
C("per-lane offsets")
A("v_lshlrev_b32 v6, 4, v%d" % vLANE)
A("v_lshrrev_b32 v7, 1, v%d" % vLANE)
A("v_and_b32 v8, 1, v%d" % vLANE)
A("v_lshlrev_b32 v8, 4, v8")
A("v_lshl_add_u32 v9, v7, 13, v8")
A("v_lshl_add_u32 v28, v7, 10, v8")
A("v_mul_u32_u24 v10, 3584, v7")
A("v_add_u32 v10, v10, v8")
A("v_lshrrev_b32 v7, 3, v%d" % vLANE)
A("v_and_b32 v8, 7, v%d" % vLANE)
A("v_lshlrev_b32 v8, 4, v8")
A("v_mov_b32 v29, %d" % L_FLAG)
C("K voff = (8*(i>>2) + (i&3))*256 + g*16")
A("v_lshrrev_b32 v7, 2, v%d" % vI)
A("v_and_b32 v8, 3, v%d" % vI)
A("v_lshl_add_u32 v7, v7, 3, v8")
A("v_lshlrev_b32 v7, 8, v7")
A("v_lshl_add_u32 v11, v%d, 4, v7" % vG)
C("V voff = 8g*256 + i*16")
A("v_lshlrev_b32 v7, 11, v%d" % vG)
A("v_lshl_add_u32 v30, v%d, 4, v7" % vI)
A("v_mov_b32 v31, 0")
C("x for final: x[b_f=sx][16*sy + (l&15)]")
A("v_and_b32 v12, 3, v%d" % vLANE)
A("v_lshlrev_b32 v12, 3, v12")
A("v_bfe_u32 v13, v%d, 2, 1" % vLANE)
A("v_lshl_add_u32 v12, v13, 2, v12")
A("s_lshl_b32 s%d, s%d, 10" % (sT2, sBF))
A("s_lshl_b32 s%d, s%d, 5" % (sT0, sCB))
A("s_add_u32 s%d, s%d, s%d" % (sT2, sT2, sT0))
C("wq soffset = cb*32 + 2*wave*262144 ; cb = sx*32+sy")
A("s_lshl_b32 s%d, s%d, 5" % (sT0, sx))
A("s_add_u32 s%d, s%d, s%d" % (sT0, sT0, sy))
A("s_lshl_b32 s%d, s%d, 5" % (sT0, sT0))
A("s_lshl_b32 s%d, s%d, 19" % (sT1, sW))
A("s_add_u32 s%d, s%d, s%d" % (sT0, sT0, sT1))
C("gu tile: syc=min(sy,27); mat = syc>=14; ti = syc-14*mat; soff = 448*sx + 32*ti + 2*wave*32*3584")
A("s_min_u32 s%d, s%d, 27" % (sT3, sy))
A("s_cmp_ge_u32 s%d, 14" % sT3)
A("s_cselect_b32 s%d, 1, 0" % sMAT)
A("s_mul_i32 s%d, s%d, 14" % (sT1, sMAT))
A("s_sub_u32 s90, s%d, s%d" % (sT3, sT1))
A("s_lshl_b32 s%d, s90, 5" % sT3)
A("s_mul_i32 s%d, s%d, 448" % (sT1, sx))
A("s_add_u32 s%d, s%d, s%d" % (sT3, sT3, sT1))
A("s_mul_i32 s%d, s%d, %d" % (sT1, sW, 64 * 3584))
A("s_add_u32 s%d, s%d, s%d" % (sT3, sT3, sT1))
A("s_lshl_b32 s91, s%d, 10" % sW)
A("s_waitcnt lgkmcnt(0)")
def mksrd(r, p, nbytes):
    A("s_mov_b32 s%d, s%d" % (r, p))
    A("s_and_b32 s%d, s%d, 0xffff" % (r + 1, p + 1))
    A("s_mov_b32 s%d, %d" % (r + 2, nbytes))
    A("s_mov_b32 s%d, 0x00020000" % (r + 3))
mksrd(sWS, 26, (8 << 20) if opt["stamps"] else WS_BYTES)
mksrd(sX, 4, 8192)
mksrd(sWQ, 10, 512 * 4096 * 2)
STAMP()
C("first loads")
A("s_load_dword s95, s[26:27], 0")
if S < 8:
    C("ticket counter (hkv=sx, b=sy) zeroed by this q producer before its q publish")
    A("s_cmp_gt_u32 s%d, 7" % sy)
    A("s_cbranch_scc1 L_nz")
    A("s_cmp_lg_u32 s%d, 0" % sW)
    A("s_cbranch_scc1 L_nz")
    A("s_lshl_b32 s92, s%d, 3" % sx)
    A("s_add_u32 s92, s92, s%d" % sy)
    A("s_lshl_b32 s92, s92, 7")
    A("s_add_u32 s92, s92, %d" % CNT)
    A("s_mov_b64 exec, 1")
    A("buffer_store_dword v31, v31, %s, s92 offen sc1" % srd(sWS))
    A("s_mov_b64 exec, -1")
    L("L_nz")
A("buffer_load_dword v%d, v12, %s, s%d offen" % (vXF, srd(sX), sT2))
A("buffer_load_dwordx4 v[20:23], v6, %s, s91 offen" % srd(sX))
A("s_lshl_b32 s92, s91, 1")
A("s_add_u32 s92, s92, %d" % L_WQ)
A("s_mov_b32 m0, s92")
A("s_add_u32 s93, s%d, 262144" % sT0)
A("buffer_load_dwordx4 v9, %s, s%d offen%s lds" % (srd(sWQ), sT0, NTW))
A("s_add_u32 s92, s92, 1024")
A("s_mov_b32 m0, s92")
mksrd(sK, 6, 64 << 20)
A("buffer_load_dwordx4 v9, %s, s93 offen%s lds" % (srd(sWQ), NTW))
A("s_cmp_eq_u32 s%d, 0" % sMAT)
A("s_cselect_b32 s16, s16, s18")
A("s_cselect_b32 s17, s17, s19")
mksrd(sWG, 16, 512 * 1792 * 2)
A("s_lshl_b32 s92, s91, 1")
A("s_add_u32 s92, s92, %d" % L_WG)
A("s_mov_b32 m0, s92")
A("s_add_u32 s93, s%d, %d" % (sT3, 32 * 3584))
A("buffer_load_dwordx4 v10, %s, s%d offen%s lds" % (srd(sWG), sT3, NTW))
A("s_add_u32 s92, s92, 1024")
A("s_mov_b32 m0, s92")
A("s_nop 0")
A("buffer_load_dwordx4 v10, %s, s93 offen%s lds" % (srd(sWG), NTW))
if opt["bar0"]:
    A("s_barrier")
KE = opt["kearly"]
def kloads(lo, hi):
    for n in range(lo, hi):
        T, t = n >> 2, n & 3
        r = 32 + n * 4
        A("buffer_load_dwordx4 v[%d:%d], v11, %s, s%d offen offset:%d%s" % (r, r + 3, srd(sK), sKVOFF, T * 1024 + t * 64, NT))
kloads(0, KE)
mksrd(sV, 8, 64 << 20)
mksrd(sWO, 12, 4096 * 512 * 2)
mksrd(sWD, 20, 1792 * 512 * 2)
mksrd(sOUT, 22, 8192)
A("s_mov_b32 s%d, s89" % sGB)
A("s_lshl_b32 s%d, s%d, 3" % (sCNT, sHKV))
A("s_add_u32 s%d, s%d, s%d" % (sCNT, sCNT, sB))
A("s_lshl_b32 s%d, s%d, 7" % (sCNT, sCNT))
A("s_add_u32 s%d, s%d, %d" % (sCNT, sCNT, CNT))
A("s_mov_b32 s%d, 1" % sFIRST)

C("P1 layernorm")
A("s_waitcnt vmcnt(%d)" % (4 + KE))
STAMP()
A("s_waitcnt lgkmcnt(0)")
A("s_add_u32 s95, s95, 1")
A("v_mov_b32 v%d, s95" % vTAG)
for k in range(4):
    unpack(20 + k, 12 + 2 * k, 13 + 2 * k)
A("v_add_f32 v20, v12, v13")
A("v_add_f32 v21, v14, v15")
A("v_add_f32 v22, v16, v17")
A("v_add_f32 v23, v18, v19")
A("v_add_f32 v20, v20, v21")
A("v_add_f32 v22, v22, v23")
A("v_add_f32 v20, v20, v22")
allsum(20, 21)
A("v_mul_f32 v20, 0x3b000000, v20")
A("v_sub_f32 v21, v12, v20")
A("v_mul_f32 v22, v21, v21")
for k in range(1, 8):
    A("v_sub_f32 v21, v%d, v20" % (12 + k))
    A("v_fmac_f32 v22, v21, v21")
allsum(22, 21)
A("v_mul_f32 v22, 0x3b000000, v22")
A("v_cvt_pk_bf16_f32 v20, v20, v22")
A("v_and_b32 v22, 0xffff0000, v20")
A("v_lshlrev_b32 v20, 16, v20")
A("v_add_f32 v22, 0x3727c5ac, v22")
A("v_cvt_pk_bf16_f32 v22, v22, v22")
A("v_lshlrev_b32 v22, 16, v22")
A("v_sqrt_f32 v22, v22")
A("s_nop 0")
A("v_cvt_pk_bf16_f32 v22, v22, v22")
A("v_lshlrev_b32 v22, 16, v22")
A("v_rcp_f32 v23, v22")
for k in range(4):
    a, b = 12 + 2 * k, 13 + 2 * k
    A("v_sub_f32 v%d, v%d, v20" % (a, a))
    A("v_sub_f32 v%d, v%d, v20" % (b, b))
    A("v_cvt_pk_bf16_f32 v21, v%d, v%d" % (a, b))
    unpack(21, a, b)
    for e in (a, b):
        A("v_mul_f32 v21, v%d, v23" % e)
        A("v_fma_f32 v24, -v21, v22, v%d" % e)
        A("v_fma_f32 v%d, v24, v23, v21" % e)
    A("v_cvt_pk_bf16_f32 v%d, v%d, v%d" % (96 + k, a, b))
A("s_mul_i32 s92, s%d, %d" % (sW, XS))
A("s_add_u32 s92, s92, %d" % L_XN)
A("v_add_u32 v7, s92, v6")
A("ds_write_b128 v7, v[96:99]")
A("ds_write_b32 v29, v31")
A("ds_write_b32 v29, v31 offset:4")
A("s_waitcnt vmcnt(%d) lgkmcnt(0)" % KE)
STAMP()
A("s_barrier")
STAMP()

C("P2")
A("v_and_b32 v7, 7, v%d" % vI)
A("v_mul_u32_u24 v7, %d, v7" % XS)
A("v_lshl_add_u32 v7, v%d, 4, v7" % vG)
A("v_add_u32 v7, %d, v7" % L_XN)
A("s_lshl_b32 s92, s%d, 7" % sW)
A("v_add_u32 v16, s92, v7")
A("v_lshlrev_b32 v8, 8, v%d" % vG)
A("v_lshl_add_u32 v8, v%d, 3, v8" % vI)
A("s_lshl_b32 s92, s%d, 11" % sW)
A("s_add_u32 s92, s92, %d" % L_WQ)
A("v_add_u32 v8, s92, v8")
A("v_add_u32 v9, %d, v8" % (L_WG - L_WQ))
for n in range(2):
    A("ds_read_b64_tr_b16 v[%d:%d], v8 offset:%d" % (64 + 4 * n, 65 + 4 * n, n * 1024))
    A("ds_read_b64_tr_b16 v[%d:%d], v8 offset:%d" % (66 + 4 * n, 67 + 4 * n, n * 1024 + 128))
    A("ds_read_b128 v[%d:%d], v16 offset:%d" % (80 + 4 * n, 83 + 4 * n, n * 64))
for n in range(2):
    A("ds_read_b64_tr_b16 v[%d:%d], v9 offset:%d" % (72 + 4 * n, 73 + 4 * n, n * 1024))
    A("ds_read_b64_tr_b16 v[%d:%d], v9 offset:%d" % (74 + 4 * n, 75 + 4 * n, n * 1024 + 128))
A("s_waitcnt lgkmcnt(4)")
A("v_mfma_f32_16x16x32_bf16 v[12:15], v[64:67], v[80:83], 0")
A("v_mfma_f32_16x16x32_bf16 v[12:15], v[68:71], v[84:87], v[12:15]")
A("s_waitcnt lgkmcnt(0)")
A("v_mfma_f32_16x16x32_bf16 v[16:19], v[72:75], v[80:83], 0")
A("v_mfma_f32_16x16x32_bf16 v[16:19], v[76:79], v[84:87], v[16:19]")
C("partials -> L_QP/L_GP + wave*512 + (g*8 + i)*16 for i<8")
A("v_lshl_add_u32 v8, v%d, 3, v%d" % (vG, vI))
A("v_lshlrev_b32 v8, 4, v8")
A("v_add_u32 v8, %d, v8" % L_QP)
A("s_lshl_b32 s92, s%d, 9" % sW)
A("v_add_u32 v9, s92, v8")
A("v_cmp_gt_u32 vcc, 8, v%d" % vI)
A("s_and_saveexec_b64 s[%d:%d], vcc" % (sEX, sEX + 1))
A("s_nop 7")
A("ds_write_b128 v9, v[12:15]")
A("v_subrev_u32 v9, %d, v9" % (L_QP - L_GP))
A("ds_write_b128 v9, v[16:19]")
A("s_mov_b64 exec, s[%d:%d]" % (sEX, sEX + 1))
A("s_waitcnt lgkmcnt(0)")
A("s_barrier")
A("s_cmp_gt_u32 s%d, 1" % sW)
A("s_cbranch_scc1 L_p3")
C("wave 0 reduces q, wave 1 reduces gate/up")
A("s_mul_i32 s92, s%d, %d" % (sW, L_QP - L_GP))
A("v_subrev_u32 v8, s92, v8")
A("v_cmp_gt_u32 vcc, 8, v%d" % vI)
A("s_and_saveexec_b64 s[%d:%d], vcc" % (sEX, sEX + 1))
for v in range(8):
    A("ds_read_b128 v[%d:%d], v8 offset:%d" % (64 + 4 * v, 67 + 4 * v, v * 512))
A("s_cmp_eq_u32 s%d, 1" % sW)
A("s_cbranch_scc1 L_p2g")
C("q: addr = QG + b*16384 + cb*64 + g*16")
A("v_lshlrev_b32 v8, 14, v%d" % vI)
A("s_lshl_b32 s92, s%d, 5" % sx)
A("s_add_u32 s92, s92, s%d" % sy)
A("s_lshl_b32 s92, s92, 6")
A("s_add_u32 s92, s92, %d" % QG)
A("s_branch L_p2j")
L("L_p2g")
C("gu: addr = HG + (mat*8 + b)*7168 + sx*896 + ti*64 + g*16 ; skip if sy>=28")
A("v_mul_u32_u24 v8, 7168, v%d" % vI)
A("s_mul_i32 s92, s%d, %d" % (sMAT, 8 * 7168))
A("s_mul_i32 s93, s%d, 896" % sx)
A("s_add_u32 s92, s92, s93")
A("s_lshl_b32 s93, s90, 6")
A("s_add_u32 s92, s92, s93")
A("s_add_u32 s92, s92, %d" % HG)
A("s_cmp_lt_u32 s%d, 28" % sy)
A("s_cbranch_scc1 L_p2j")
A("s_waitcnt lgkmcnt(0)")
A("s_mov_b64 exec, s[%d:%d]" % (sEX, sEX + 1))
A("s_branch L_p3")
L("L_p2j")
A("v_lshl_add_u32 v8, v%d, 4, v8" % vG)
A("s_waitcnt lgkmcnt(0)")
for v in range(1, 8):
    for r in range(4):
        A("v_add_f32 v%d, v%d, v%d" % (64 + r, 64 + r, 64 + 4 * v + r))
A("v_cvt_pk_bf16_f32 v16, v64, v65")
A("v_cvt_pk_bf16_f32 v18, v66, v67")
A("v_mov_b32 v17, v%d" % vTAG)
A("v_mov_b32 v19, v%d" % vTAG)
A("buffer_store_dwordx4 v[16:19], v8, %s, s92 offen sc1" % srd(sWS))
A("s_mov_b64 exec, s[%d:%d]" % (sEX, sEX + 1))

L("L_p3")
STAMP()
def vloads():
    for e in range(8):
        r = 64 + e * 4
        A("buffer_load_dwordx4 v[%d:%d], v30, %s, s%d offen offset:%d%s" % (r, r + 3, srd(sV), sKVOFF, e * 256, NT))
A("s_cmp_ge_u32 s%d, %d" % (sW, S))
A("s_cbranch_scc1 L_p3x")
kloads(KE, 8)
vloads()
def tile_loads(tag):
    A("s_cmp_gt_u32 s%d, 4" % sRL)
    A("s_cbranch_scc1 L_tx%s" % tag)
    A("s_cmp_eq_u32 s%d, 4" % sRL)
    A("s_cbranch_scc1 L_td%s" % tag)
    C("wo column tile: soff = (128j + 32q)*1024 + ns*128 + wave*32 ; LDS L_WO + wave*4096 + q*1024")
    A("s_lshl_b32 s92, s%d, 17" % sJ)
    A("s_lshl_b32 s93, s%d, 7" % sNS)
    A("s_add_u32 s92, s92, s93")
    A("s_lshl_b32 s93, s%d, 5" % sRL)
    A("s_add_u32 s92, s92, s93")
    A("s_lshl_b32 s93, s%d, 12" % sRL)
    A("s_add_u32 s93, s93, %d" % L_WO)
    for q in range(4):
        A("s_mov_b32 m0, s93")
        A("s_add_u32 s93, s93, 1024")
        A("buffer_load_dwordx4 v28, %s, s92 offen%s lds" % (srd(sWO), NTW))
        A("s_add_u32 s92, s92, 32768")
    A("s_branch L_tx%s" % tag)
    L("L_td%s" % tag)
    C("wd tile: soff = (224kg + 32q)*1024 + ct*32")
    A("s_mul_i32 s92, s%d, %d" % (sKG, 224 * 1024))
    A("s_lshl_b32 s93, s%d, 5" % sCT)
    A("s_add_u32 s92, s92, s93")
    A("s_mov_b32 s93, %d" % L_WD)
    for q in range(7):
        A("s_mov_b32 m0, s93")
        A("s_add_u32 s93, s93, 1024")
        A("buffer_load_dwordx4 v28, %s, s92 offen%s lds" % (srd(sWD), NTW))
        A("s_add_u32 s92, s92, 32768")
    L("L_tx%s" % tag)
if not opt["tdefer"]:
    tile_loads("a")
L("L_p3x")
STAMP()
QPW = S if S < 8 else opt["qpw"]
A("s_cmp_gt_u32 s%d, %d" % (sW, S))
A("s_cbranch_scc1 L_b3")
A("s_cmp_lg_u32 s%d, %d" % (sW, QPW))
A("s_cbranch_scc1 L_qf")
C("q poll addr = QG + b*16384 + hkv*2048 + l*32")
A("s_lshl_b32 s92, s%d, 14" % sB)
A("s_lshl_b32 s93, s%d, 11" % sHKV)
A("s_add_u32 s92, s92, s93")
A("s_add_u32 s92, s92, %d" % QG)
A("v_lshlrev_b32 v8, 5, v%d" % vLANE)
L("L_qretry")
A("buffer_load_dwordx4 v[12:15], v8, %s, s92 offen sc1" % srd(sWS))
A("buffer_load_dwordx4 v[16:19], v8, %s, s92 offen offset:16 sc1" % srd(sWS))
A("s_waitcnt vmcnt(0)")
tagcheck([13, 15, 17, 19], 20, 21, "L_qretry")
A("v_mov_b32 v20, v12")
A("v_mov_b32 v21, v14")
A("v_mov_b32 v22, v16")
A("v_mov_b32 v23, v18")
A("v_mov_b32 v9, 1")
A("v_add_u32 v8, %d, v6" % L_Q)
A("ds_write_b128 v8, v[20:23]")
A("s_waitcnt lgkmcnt(0)")
A("ds_write_b32 v29, v9")
if S < 8:
    A("s_branch L_b3")
C("wait for q flag in LDS")
L("L_qf")
A("ds_read_b32 v12, v29")
A("s_waitcnt lgkmcnt(0)")
A("v_readfirstlane_b32 s92, v12")
A("s_add_u32 s%d, s%d, 1" % (sSPIN, sSPIN))
A("s_cmp_eq_u32 s92, 1")
A("s_cbranch_scc1 L_qf_ok")
A("s_cmp_lt_u32 s%d, %d" % (sSPIN, opt["spin"] * 16))
A("s_cbranch_scc1 L_qf")
L("L_qf_ok")
A("s_mov_b32 s%d, 0" % sSPIN)
STAMP()

C("P5")
A("v_and_b32 v9, 3, v%d" % vI)
A("v_lshlrev_b32 v9, 8, v9")
A("v_lshl_add_u32 v9, v%d, 4, v9" % vG)
A("v_add_u32 v9, %d, v9" % L_Q)
for t in range(4):
    A("ds_read_b128 v[%d:%d], v9 offset:%d" % (96 + 4 * t, 99 + 4 * t, t * 64))
if S == 8:
    waitv(8)
    A("s_waitcnt lgkmcnt(0)")
else:
    waitv(8)
    A("s_branch L_unit1")
    L("L_unit")
    A("s_waitcnt vmcnt(8)")
    L("L_unit1")
    C("ticket request unless the pool is known to be empty")
    A("ds_read_b32 v12, v29 offset:4")
    A("s_waitcnt lgkmcnt(0)")
    A("v_readfirstlane_b32 s%d, v12" % sHAST)
    A("v_mov_b32 v122, 1")
    A("s_xor_b32 s%d, s%d, 1" % (sHAST, sHAST))
    if S == 8:
        A("s_mov_b32 s%d, 0" % sHAST)
    A("s_cmp_eq_u32 s%d, 0" % sHAST)
    A("s_cbranch_scc1 L_notk")
    A("s_mov_b64 exec, 1")
    A("buffer_atomic_add v122, v31, %s, s%d offen sc0 sc1" % (srd(sWS), sCNT))
    A("s_mov_b64 exec, -1")
    L("L_notk")
for T in range(2):
    for t in range(4):
        r = 32 + (T * 4 + t) * 4
        acc = 112 + 4 * T
        c = "0" if t == 0 else "v[%d:%d]" % (acc, acc + 3)
        A("v_mfma_f32_16x16x32_bf16 v[%d:%d], v[%d:%d], v[%d:%d], %s" % (acc, acc + 3, r, r + 3, 96 + 4 * t, 99 + 4 * t, c))
A("s_nop 7")
A("s_nop 1")
for k in range(4):
    A("v_cvt_pk_bf16_f32 v%d, v%d, v%d" % (20 + k, 112 + 2 * k, 113 + 2 * k))
for k in range(4):
    unpack(20 + k, 12 + 2 * k, 13 + 2 * k)
for k in range(8):
    A("v_mul_f32 v%d, s%d, v%d" % (12 + k, sSCALE, 12 + k))
for k in range(4):
    A("v_cvt_pk_bf16_f32 v%d, v%d, v%d" % (20 + k, 12 + 2 * k, 13 + 2 * k))
for k in range(4):
    unpack(20 + k, 12 + 2 * k, 13 + 2 * k)
A("v_max3_f32 v20, v12, v13, v14")
A("v_max3_f32 v20, v20, v15, v16")
A("v_max3_f32 v20, v20, v17, v18")
A("v_max_f32 v20, v20, v19")
crossrow(20, 21, "v_max_f32")
for k in range(8):
    A("v_sub_f32 v%d, v%d, v20" % (12 + k, 12 + k))
for k in range(8):
    A("v_mul_f32 v%d, s%d, v%d" % (12 + k, sLOG2E, 12 + k))
for k in range(8):
    A("v_exp_f32 v%d, v%d" % (12 + k, 12 + k))
A("s_nop 0")
A("v_add_f32 v22, v12, v13")
A("v_add_f32 v23, v14, v15")
A("v_add_f32 v22, v22, v16")
A("v_add_f32 v23, v23, v17")
A("v_add_f32 v22, v22, v18")
A("v_add_f32 v23, v23, v19")
A("v_add_f32 v22, v22, v23")
crossrow(22, 21, "v_add_f32")
for k in range(4):
    A("v_cvt_pk_bf16_f32 v%d, v%d, v%d" % (24 + k, 12 + 2 * k, 13 + 2 * k))

C("P6")
C("LDS addr for partial O: L_OW + wave*2048 + i*512 + g*128 (+j*16)")
A("s_lshl_b32 s92, s%d, 11" % sW)
A("s_add_u32 s92, s92, %d" % L_OW)
A("v_lshlrev_b32 v9, 9, v%d" % vI)
A("v_lshl_add_u32 v9, v%d, 7, v9" % vG)
A("v_add_u32 v9, s92, v9")
A("s_lshl_b32 s92, s%d, 2" % sW)
A("s_add_u32 s92, s92, %d" % L_ML)
A("v_lshlrev_b32 v10, 5, v%d" % vI)
A("v_add_u32 v10, s92, v10")
STAMP()
if S == 8:
    waitv(0)
else:
    A("s_waitcnt vmcnt(0)")
STAMP()
for j in range(8):
    w = j >> 1
    sel = sSELHI if (j & 1) else sSELLO
    for u in range(4):
        A("v_perm_b32 v%d, v%d, v%d, s%d" % (32 + 4 * j + u, 64 + 4 * (2 * u + 1) + w, 64 + 4 * (2 * u) + w, sel))
A("s_nop 1")
for j in range(8):
    A("v_mfma_f32_16x16x32_bf16 v[%d:%d], v[%d:%d], v[24:27], 0" % (64 + 4 * j, 67 + 4 * j, 32 + 4 * j, 35 + 4 * j))
A("v_cmp_gt_u32 vcc, 4, v%d" % vI)
if S == 8:
    A("s_and_saveexec_b64 s[%d:%d], vcc" % (sEX, sEX + 1))
    A("ds_write_b32 v10, v20")
    A("ds_write_b32 v10, v22 offset:128")
    A("s_nop 7")
    for j in range(8):
        A("ds_write_b128 v9, v[%d:%d] offset:%d" % (64 + 4 * j, 67 + 4 * j, j * 16))
    A("s_mov_b64 exec, s[%d:%d]" % (sEX, sEX + 1))
else:
    A("s_cmp_eq_u32 s%d, 0" % sFIRST)
    A("s_cbranch_scc1 L_merge")
    A("v_mov_b32 v120, v20")
    A("v_mov_b32 v121, v22")
    A("s_and_saveexec_b64 s[%d:%d], vcc" % (sEX, sEX + 1))
    A("s_nop 7")
    A("s_branch L_wr")
    L("L_merge")
    C("online merge of this unit into the wave's running partial (kept in LDS)")
    A("v_max_f32 v12, v120, v20")
    A("v_sub_f32 v13, v120, v12")
    A("v_sub_f32 v14, v20, v12")
    A("v_mul_f32 v13, s%d, v13" % sLOG2E)
    A("v_mul_f32 v14, s%d, v14" % sLOG2E)
    A("v_exp_f32 v13, v13")
    A("v_exp_f32 v14, v14")
    A("v_mov_b32 v120, v12")
    A("v_mul_f32 v121, v13, v121")
    A("v_fmac_f32 v121, v14, v22")
    A("s_and_saveexec_b64 s[%d:%d], vcc" % (sEX, sEX + 1))
    A("s_nop 7")
    for j in range(8):
        A("ds_read_b128 v[%d:%d], v9 offset:%d" % (32 + 4 * j, 35 + 4 * j, j * 16))
    A("s_waitcnt lgkmcnt(0)")
    for k in range(32):
        A("v_mul_f32 v%d, v14, v%d" % (64 + k, 64 + k))
        A("v_fmac_f32 v%d, v13, v%d" % (64 + k, 32 + k))
    L("L_wr")
    for j in range(8):
        A("ds_write_b128 v9, v[%d:%d] offset:%d" % (64 + 4 * j, 67 + 4 * j, j * 16))
    A("ds_write_b32 v10, v120")
    A("ds_write_b32 v10, v121 offset:128")
    A("s_mov_b64 exec, s[%d:%d]" % (sEX, sEX + 1))
    A("s_mov_b32 s%d, 0" % sFIRST)
    A("s_cmp_eq_u32 s%d, 0" % sHAST)
    A("s_cbranch_scc1 L_b3")
    A("v_readfirstlane_b32 s92, v122")
    A("s_cmp_ge_u32 s92, %d" % POOL)
    A("s_cbranch_scc1 L_empty")
    C("claimed unit = chunk t/(8-S), slot S + t%%(8-S)")
    if S == 6:
        A("s_lshr_b32 s93, s92, 1")
        A("s_and_b32 s92, s92, 1")
    elif S == 7:
        A("s_mov_b32 s93, s92")
        A("s_mov_b32 s92, 0")
    elif S == 5:
        A("s_mul_i32 s93, s92, 86")
        A("s_lshr_b32 s93, s93, 8")
        A("s_mul_i32 s94, s93, 3")
        A("s_sub_u32 s92, s92, s94")
    A("s_lshl_b32 s93, s93, 3")
    A("s_add_u32 s92, s92, s93")
    A("s_add_u32 s92, s92, %d" % S)
    A("s_lshl_b32 s92, s92, 13")
    A("s_add_u32 s%d, s%d, s92" % (sKVOFF, sGB))
    A("s_waitcnt lgkmcnt(0)")
    kloads(0, 8)
    vloads()
    A("s_branch L_unit")
    L("L_empty")
    A("v_mov_b32 v12, 1")
    A("ds_write_b32 v29, v12 offset:4")
L("L_b3")
A("s_waitcnt lgkmcnt(0)")
A("s_barrier")

C("P7")
A("s_cmp_ge_u32 s%d, 4" % sW)
A("s_cbranch_scc1 L_p8")
C("addr = L_OW + h*512 + (l>>4)*128 + (l&3)*32 + ((l>>2)&3)*4")
A("s_lshl_b32 s92, s%d, 9" % sW)
A("s_add_u32 s92, s92, %d" % L_OW)
A("v_lshlrev_b32 v9, 7, v%d" % vG)
A("v_and_b32 v10, 3, v%d" % vLANE)
A("v_lshl_add_u32 v9, v10, 5, v9")
A("v_bfe_u32 v10, v%d, 2, 2" % vLANE)
A("v_lshl_add_u32 v9, v10, 2, v9")
A("v_add_u32 v9, s92, v9")
A("s_lshl_b32 s92, s%d, 5" % sW)
A("s_add_u32 s92, s92, %d" % L_ML)
A("v_mov_b32 v10, s92")
A("ds_read_b128 v[32:35], v10")
A("ds_read_b128 v[36:39], v10 offset:16")
A("ds_read_b128 v[40:43], v10 offset:128")
A("ds_read_b128 v[44:47], v10 offset:144")
for v in range(5):
    A("ds_read_b32 v%d, v9 offset:%d" % (48 + 2 * v, v * 2048))
    A("ds_read_b32 v%d, v9 offset:%d" % (49 + 2 * v, v * 2048 + 16))
A("s_waitcnt lgkmcnt(10)")
A("v_max3_f32 v12, v32, v33, v34")
A("v_max3_f32 v12, v12, v35, v36")
for v in range(5, S):
    A("v_max_f32 v12, v12, v%d" % (32 + v))
for v in range(S):
    A("v_sub_f32 v%d, v%d, v12" % (32 + v, 32 + v))
for v in range(S):
    A("v_mul_f32 v%d, s%d, v%d" % (32 + v, sLOG2E, 32 + v))
for v in range(S):
    A("v_exp_f32 v%d, v%d" % (32 + v, 32 + v))
A("s_waitcnt lgkmcnt(4)")
for v in range(5, S):
    A("ds_read_b32 v%d, v9 offset:%d" % (48 + 2 * v, v * 2048))
    A("ds_read_b32 v%d, v9 offset:%d" % (49 + 2 * v, v * 2048 + 16))
A("v_mul_f32 v14, v32, v40")
for v in range(1, S):
    A("v_fmac_f32 v14, v%d, v%d" % (32 + v, 40 + v))
A("s_waitcnt lgkmcnt(0)")
A("v_mul_f32 v16, v32, v48")
A("v_mul_f32 v18, v32, v49")
for v in range(1, S):
    A("v_fmac_f32 v16, v%d, v%d" % (32 + v, 48 + 2 * v))
    A("v_fmac_f32 v18, v%d, v%d" % (32 + v, 49 + 2 * v))
A("v_mov_b32 v13, v%d" % vTAG)
A("v_mov_b32 v15, v%d" % vTAG)
A("v_mov_b32 v17, v%d" % vTAG)
A("v_mov_b32 v19, v%d" % vTAG)
C("slot = ((hkv*4+wave)*8 + b)*4 + c")
A("s_lshl_b32 s92, s%d, 2" % sHKV)
A("s_add_u32 s92, s92, s%d" % sW)
A("s_lshl_b32 s92, s92, 3")
A("s_add_u32 s92, s92, s%d" % sB)
A("s_lshl_b32 s92, s92, 2")
A("s_add_u32 s92, s92, s%d" % sCc)
A("s_lshl_b32 s93, s92, 10")
A("s_add_u32 s93, s93, %d" % OG)
A("s_lshl_b32 s92, s92, 4")
A("s_add_u32 s92, s92, %d" % MLG)
A("buffer_store_dwordx4 v[16:19], v6, %s, s93 offen sc1" % srd(sWS))
A("s_mov_b64 exec, 1")
A("buffer_store_dwordx4 v[12:15], v31, %s, s92 offen sc1" % srd(sWS))
A("s_mov_b64 exec, -1")

L("L_p8")
STAMP()
C("slot base = (j*8 + wave)*4")
A("s_lshl_b32 s92, s%d, 3" % sJ)
A("s_add_u32 s92, s92, s%d" % sW)
A("s_lshl_b32 s93, s92, 12")
A("s_add_u32 s93, s93, %d" % OG)
A("s_lshl_b32 s92, s92, 6")
A("s_add_u32 s92, s92, %d" % MLG)
A("s_mul_i32 s94, s%d, 7168" % sW)
A("s_mul_i32 s95, s%d, 896" % sKG)
A("s_add_u32 s94, s94, s95")
A("s_add_u32 s94, s94, %d" % HG)
A("v_min_u32 v9, 55, v%d" % vLANE)
A("v_lshlrev_b32 v10, 4, v9")
A("v_add_u32 v11, %d, v10" % (8 * 7168))
def oload(c):
    A("buffer_load_dwordx4 v[%d:%d], v6, %s, s93 offen offset:%d sc1" % (32 + 4 * c, 35 + 4 * c, srd(sWS), c * 1024))
def hload():
    A("buffer_load_dwordx4 v[64:67], v10, %s, s94 offen sc1" % srd(sWS))
    A("buffer_load_dwordx4 v[68:71], v11, %s, s94 offen sc1" % srd(sWS))
A("v_and_b32 v18, 3, v%d" % vLANE)
A("v_lshlrev_b32 v18, 4, v18")
if opt["ptouch"]:
    C("pre-touch the pages used later on the critical path (results unused)")
    A("buffer_load_dword v80, v6, %s, s93 offen" % srd(sWS))
    A("s_cmp_gt_u32 s%d, 4" % sRL)
    A("s_cbranch_scc1 L_ptx")
    A("s_cmp_eq_u32 s%d, 4" % sRL)
    A("s_cbranch_scc1 L_pte")
    A("v_lshlrev_b32 v12, 17, v%d" % vI)
    A("s_lshl_b32 s90, s%d, 12" % sJ)
    A("s_add_u32 s90, s90, %d" % SG)
    A("buffer_load_dword v81, v12, %s, s90 offen" % srd(sWS))
    A("s_branch L_ptf")
    L("L_pte")
    A("v_lshlrev_b32 v12, 15, v%d" % vI)
    A("s_lshl_b32 s90, s%d, 12" % sx)
    A("s_add_u32 s90, s90, %d" % DG)
    A("buffer_load_dword v81, v12, %s, s90 offen" % srd(sWS))
    L("L_ptf")
    A("s_cmp_lg_u32 s%d, 0" % sW)
    A("s_cbranch_scc1 L_ptx")
    A("v_lshlrev_b32 v12, 12, v%d" % vLANE)
    A("v_min_u32 v12, %d, v12" % (31 * 4096))
    A("s_lshl_b32 s90, s%d, 17" % sx)
    A("s_add_u32 s90, s90, %d" % SG)
    A("buffer_load_dword v82, v12, %s, s90 offen" % srd(sWS))
    A("v_and_b32 v12, 7, v%d" % vLANE)
    A("v_lshlrev_b32 v12, 12, v12")
    A("s_lshl_b32 s90, s%d, 15" % sx)
    A("s_add_u32 s90, s90, %d" % DG)
    A("buffer_load_dword v83, v12, %s, s90 offen" % srd(sWS))
    L("L_ptx")
hload()
A("buffer_load_dwordx4 v[48:51], v18, %s, s92 offen sc1" % srd(sWS))
C("A-fragment preload for P9 (own tile)")
A("s_mov_b32 s95, 0")
A("s_mov_b32 s89, 0")
A("s_cmp_gt_u32 s%d, 4" % sRL)
A("s_cbranch_scc1 L_mchk")
A("v_lshlrev_b32 v8, 8, v%d" % vG)
A("v_lshl_add_u32 v8, v%d, 3, v8" % vI)
A("s_lshl_b32 s90, s%d, 12" % sRL)
A("s_add_u32 s90, s90, %d" % L_WO)
assert L_WO + 4 * 4096 == L_WD
A("v_add_u32 v8, s90, v8")
A("s_waitcnt vmcnt(3)")
for t in range(7):
    A("ds_read_b64_tr_b16 v[%d:%d], v8 offset:%d" % (96 + 4 * t, 97 + 4 * t, t * 1024))
    A("ds_read_b64_tr_b16 v[%d:%d], v8 offset:%d" % (98 + 4 * t, 99 + 4 * t, t * 1024 + 128))
L("L_mchk")
A("s_waitcnt vmcnt(0) lgkmcnt(0)")
A("v_xor_b32 v12, v49, v%d" % vTAG)
A("v_xor_b32 v13, v51, v%d" % vTAG)
A("v_or_b32 v12, v12, v13")
A("v_cmp_eq_u32 vcc, 0, v12")
A("s_and_b32 s90, vcc_lo, 15")
A("s_andn2_b32 s90, s90, s95")
A("s_or_b32 s95, s95, s90")
A("s_andn2_b32 s90, s90, s89")
for c in range(4):
    A("s_bitcmp0_b32 s90, %d" % c)
    A("s_cbranch_scc1 L_msk%d" % c)
    oload(c)
    L("L_msk%d" % c)
A("s_cmp_eq_u32 s95, 15")
A("s_cbranch_scc1 L_ochk")
A("s_add_u32 s%d, s%d, 1" % (sSPIN, sSPIN))
A("s_cmp_ge_u32 s%d, %d" % (sSPIN, opt["spin"]))
A("s_cbranch_scc1 L_ochk")
A("buffer_load_dwordx4 v[48:51], v18, %s, s92 offen sc1" % srd(sWS))
A("s_andn2_b32 s89, 15, s95")
A("s_bcnt1_i32_b32 s90, s89")
A("s_cmp_eq_u32 s90, %d" % (1 if opt["spec"] else 99))
A("s_cselect_b32 s89, s89, 0")
for c in range(4):
    A("s_bitcmp0_b32 s89, %d" % c)
    A("s_cbranch_scc1 L_ssk%d" % c)
    oload(c)
    L("L_ssk%d" % c)
A("s_branch L_mchk")
L("L_ochk")
A("s_waitcnt vmcnt(0)")
tg = [33, 35, 37, 39, 41, 43, 45, 47, 65, 67, 69, 71]
A("v_xor_b32 v12, v%d, v%d" % (tg[0], vTAG))
for t in tg[1:]:
    A("v_xor_b32 v13, v%d, v%d" % (t, vTAG))
    A("v_or_b32 v12, v12, v13")
A("v_cmp_ne_u32 vcc, 0, v12")
A("s_cbranch_vccz L_ook")
A("s_add_u32 s%d, s%d, 1" % (sSPIN, sSPIN))
A("s_cmp_ge_u32 s%d, %d" % (sSPIN, opt["spin"]))
A("s_cbranch_scc1 L_ook")
for c in range(4):
    oload(c)
hload()
A("s_branch L_ochk")
L("L_ook")
STAMP()
C("broadcast M_c, L_c from lanes 0..3")
for c in range(4):
    A("v_readlane_b32 s%d, v48, %d" % (8 + c, c))
    A("v_readlane_b32 s%d, v50, %d" % (12 + c, c))
A("s_nop 1")
for c in range(4):
    A("v_mov_b32 v%d, s%d" % (48 + 4 * c, 8 + c))
    A("v_mov_b32 v%d, s%d" % (50 + 4 * c, 12 + c))
A("v_max3_f32 v12, v48, v52, v56")
A("v_max_f32 v12, v12, v60")
for c in range(4):
    A("v_sub_f32 v%d, v%d, v12" % (48 + 4 * c, 48 + 4 * c))
for c in range(4):
    A("v_mul_f32 v%d, s%d, v%d" % (48 + 4 * c, sLOG2E, 48 + 4 * c))
for c in range(4):
    A("v_exp_f32 v%d, v%d" % (48 + 4 * c, 48 + 4 * c))
unpack(64, 72, 73)
unpack(66, 74, 75)
unpack(68, 76, 77)
unpack(70, 78, 79)
for r in range(4):
    A("v_mul_f32 v%d, v%d, v%d" % (72 + r, 72 + r, 76 + r))
A("v_cvt_pk_bf16_f32 v64, v72, v73")
A("v_cvt_pk_bf16_f32 v65, v74, v75")
A("v_mul_f32 v13, v48, v50")
A("v_mul_f32 v14, v48, v32")
A("v_mul_f32 v15, v48, v34")
for c in range(1, 4):
    A("v_fmac_f32 v13, v%d, v%d" % (48 + 4 * c, 50 + 4 * c))
    A("v_fmac_f32 v14, v%d, v%d" % (48 + 4 * c, 32 + 4 * c))
    A("v_fmac_f32 v15, v%d, v%d" % (48 + 4 * c, 34 + 4 * c))
A("v_rcp_f32 v16, v13")
A("s_mul_i32 s92, s%d, %d" % (sW, HS))
A("s_add_u32 s92, s92, %d" % L_HT)
A("v_lshlrev_b32 v9, 3, v9")
A("v_add_u32 v9, s92, v9")
A("ds_write_b64 v9, v[64:65]")
for e in (14, 15):
    A("v_mul_f32 v17, v%d, v16" % e)
    A("v_fma_f32 v18, -v17, v13, v%d" % e)
    A("v_fma_f32 v%d, v18, v16, v17" % e)
A("v_cvt_pk_bf16_f32 v14, v14, v15")
A("s_mul_i32 s92, s%d, %d" % (sW, OS))
A("s_add_u32 s92, s92, %d" % L_OT)
A("v_lshlrev_b32 v9, 2, v%d" % vLANE)
A("v_add_u32 v9, s92, v9")
A("ds_write_b32 v9, v14")
A("s_waitcnt lgkmcnt(0)")
A("s_barrier")

C("P9")
A("s_cmp_gt_u32 s%d, 4" % sRL)
A("s_cbranch_scc1 L_done")
A("v_and_b32 v9, 7, v%d" % vI)
A("s_cmp_eq_u32 s%d, 4" % sRL)
A("s_cbranch_scc1 L_p9e")
A("v_mul_u32_u24 v7, %d, v9" % OS)
A("v_lshl_add_u32 v7, v%d, 4, v7" % vG)
A("v_add_u32 v7, %d, v7" % L_OT)
def gemv_pre(nk):
    for t in range(nk):
        A("ds_read_b128 v[%d:%d], v7 offset:%d" % (64 + 4 * t, 67 + 4 * t, t * 64))
    for t in range(nk):
        A("s_waitcnt lgkmcnt(%d)" % (nk - 1 - t))
        c = "0" if t == 0 else "v[12:15]"
        A("v_mfma_f32_16x16x32_bf16 v[12:15], v[%d:%d], v[%d:%d], %s" % (96 + 4 * t, 99 + 4 * t, 64 + 4 * t, 67 + 4 * t, c))
    A("s_nop 7")
    A("s_nop 1")
gemv_pre(4)
C("addr: voff = i*131072 + g*32 ; soff = SG + j*4096 + (64ns+16ct)*8")
A("v_lshlrev_b32 v8, 17, v%d" % vI)
A("v_lshl_add_u32 v8, v%d, 4, v8" % vG)
A("s_lshl_b32 s92, s%d, 12" % sJ)
A("s_lshl_b32 s93, s%d, 9" % sNS)
A("s_add_u32 s92, s92, s93")
A("s_lshl_b32 s93, s%d, 7" % sRL)
A("s_add_u32 s92, s92, s93")
A("s_add_u32 s92, s92, %d" % SG)
A("s_branch L_p9pub")
L("L_p9e")
A("v_mul_u32_u24 v7, %d, v9" % HS)
A("v_lshl_add_u32 v7, v%d, 4, v7" % vG)
A("v_add_u32 v7, %d, v7" % L_HT)
gemv_pre(7)
C("addr: voff = i*32768 + g*32 ; soff = DG + kg*4096 + ct*128")
A("v_lshlrev_b32 v8, 15, v%d" % vI)
A("v_lshl_add_u32 v8, v%d, 4, v8" % vG)
A("s_lshl_b32 s92, s%d, 12" % sKG)
A("s_lshl_b32 s93, s%d, 7" % sCT)
A("s_add_u32 s92, s92, s93")
A("s_add_u32 s92, s92, %d" % DG)
L("L_p9pub")
A("v_mov_b32 v16, v12")
A("v_mov_b32 v17, v%d" % vTAG)
A("v_mov_b32 v18, v13")
A("v_mov_b32 v19, v%d" % vTAG)
A("v_mov_b32 v20, v14")
A("v_mov_b32 v21, v%d" % vTAG)
A("v_mov_b32 v22, v15")
A("v_mov_b32 v23, v%d" % vTAG)
A("v_cmp_gt_u32 vcc, 8, v%d" % vI)
A("s_and_saveexec_b64 s[%d:%d], vcc" % (sEX, sEX + 1))
A("buffer_store_dwordx4 v[16:19], v8, %s, s92 offen sc1" % srd(sWS))
A("buffer_store_dwordx4 v[20:23], v8, %s, s92 offen offset:64 sc1" % srd(sWS))
A("s_mov_b64 exec, s[%d:%d]" % (sEX, sEX + 1))

A("s_cmp_lg_u32 s%d, 0" % sW)
A("s_cbranch_scc1 L_done")
C("P10: voff = (l>>3)*4096 + (l&7)*16")
A("v_lshrrev_b32 v8, 3, v%d" % vLANE)
A("v_and_b32 v9, 7, v%d" % vLANE)
A("v_lshlrev_b32 v10, 4, v9")
A("v_lshl_add_u32 v8, v8, 12, v10")
A("s_lshl_b32 s93, s%d, 7" % sCB)
A("s_lshl_b32 s92, s%d, 17" % sBF)
A("s_add_u32 s92, s92, s93")
A("s_add_u32 s92, s92, %d" % SG)
A("s_add_u32 s8, s92, 32768")
A("s_add_u32 s9, s92, 65536")
A("s_add_u32 s10, s92, 98304")
A("s_lshl_b32 s11, s%d, 15" % sBF)
A("s_add_u32 s11, s11, s93")
A("s_add_u32 s11, s11, %d" % DG)
STAMP()
L("L_fretry")
for k, sr in enumerate((92, 8, 9, 10, 11)):
    A("buffer_load_dwordx4 v[%d:%d], v8, %s, s%d offen sc1" % (32 + 4 * k, 35 + 4 * k, srd(sWS), sr))
A("s_waitcnt vmcnt(0)")
tagcheck([33 + 2 * k for k in range(10)], 16, 17, "L_fretry")
STAMP()
A("v_add_f32 v12, v32, v36")
A("v_add_f32 v13, v34, v38")
A("v_add_f32 v14, v40, v44")
A("v_add_f32 v15, v42, v46")
A("v_add_f32 v12, v12, v14")
A("v_add_f32 v13, v13, v15")
A("v_mov_b32 v14, v48")
A("v_mov_b32 v15, v50")
A("s_nop 1")
for r in range(4):
    A("v_add_f32_dpp v%d, v%d, v%d row_ror:8 row_mask:0xf bank_mask:0xf" % (12 + r, 12 + r, 12 + r))
for r in range(4):
    A("v_mov_b32 v%d, v%d" % (16 + r, 12 + r))
A("s_nop 1")
for r in range(4):
    A("v_permlane16_swap_b32 v%d, v%d" % (12 + r, 16 + r))
for r in range(4):
    A("v_add_f32 v%d, v%d, v%d" % (12 + r, 12 + r, 16 + r))
for r in range(4):
    A("v_mov_b32 v%d, v%d" % (16 + r, 12 + r))
A("s_nop 1")
for r in range(4):
    A("v_permlane32_swap_b32 v%d, v%d" % (12 + r, 16 + r))
for r in range(4):
    A("v_add_f32 v%d, v%d, v%d" % (12 + r, 12 + r, 16 + r))
C("v12,v13 = s pair ; v14,v15 = d pair")
A("v_cvt_pk_bf16_f32 v12, v12, v13")
A("v_cvt_pk_bf16_f32 v14, v14, v15")
unpack(12, 16, 17)
unpack(14, 18, 19)
unpack(vXF, 20, 21)
for e in range(2):
    A("v_mul_f32 v%d, s%d, v%d" % (22 + e, sLOG2E, 18 + e))
for e in range(2):
    A("v_exp_f32 v%d, -v%d" % (22 + e, 22 + e))
A("s_nop 0")
for e in range(2):
    A("v_add_f32 v%d, 1.0, v%d" % (22 + e, 22 + e))
for e in range(2):
    A("v_rcp_f32 v%d, v%d" % (24 + e, 22 + e))
A("s_nop 0")
for e in range(2):
    A("v_mul_f32 v12, v%d, v%d" % (18 + e, 24 + e))
    A("v_fma_f32 v13, -v12, v%d, v%d" % (22 + e, 18 + e))
    A("v_fma_f32 v%d, v13, v%d, v12" % (18 + e, 24 + e))
A("v_cvt_pk_bf16_f32 v12, v18, v19")
unpack(12, 18, 19)
for e in range(2):
    A("v_mul_f32 v%d, v%d, v%d" % (18 + e, 16 + e, 18 + e))
A("v_cvt_pk_bf16_f32 v12, v18, v19")
unpack(12, 18, 19)
for e in range(2):
    A("v_add_f32 v%d, v%d, v%d" % (18 + e, 20 + e, 18 + e))
A("v_cvt_pk_bf16_f32 v12, v18, v19")
A("v_and_b32 v27, 3, v%d" % vLANE)
A("v_lshlrev_b32 v27, 3, v27")
A("v_bfe_u32 v13, v%d, 2, 1" % vLANE)
A("v_lshl_add_u32 v27, v13, 2, v27")
A("s_mov_b64 exec, 0xff")
A("buffer_store_dword v12, v27, %s, s%d offen" % (srd(sOUT), sT2))
A("s_cmp_lg_u32 s2, 0")
A("s_cbranch_scc1 L_done")
A("s_mov_b64 exec, 1")
A("buffer_store_dword v%d, v31, %s, 0 offen sc1" % (vTAG, srd(sWS)))
L("L_done")
if opt["stamps"]:
    A("s_mov_b64 exec, -1")
    A("v_writelane_b32 v128, s%d, 16" % sSPIN)
    if opt["dbg"]:
        A("s_memrealtime s[96:97]")
        A("s_waitcnt lgkmcnt(0)")
        A("v_writelane_b32 v128, s96, 14")
        A("v_readlane_b32 s96, v128, 0")
        A("s_not_b32 s96, s96")
        A("v_writelane_b32 v128, s96, 15")
        A("s_mov_b32 s4, s24")
        A("s_and_b32 s5, s25, 0xffff")
        A("s_mov_b32 s6, 256")
        A("s_mov_b32 s7, 0x00020000")
        A("v_lshlrev_b32 v9, 2, v%d" % vLANE)
        A("s_mov_b64 exec, 0xffff")
        A("buffer_atomic_umax v128, v9, s[4:7], 0 offen")
        A("s_endpgm")
    A("s_lshl_b32 s92, s2, 3")
    A("s_add_u32 s92, s92, s%d" % sW)
    A("s_lshl_b32 s92, s92, 7")
    A("s_add_u32 s92, s92, %d" % (4 << 20))
    A("v_lshlrev_b32 v9, 2, v%d" % vLANE)
    A("s_mov_b64 exec, 0xffffffff")
    A("buffer_store_dword v128, v9, %s, s92 offen" % srd(sWS))
L("L_end")
A("s_endpgm")
out.append('.section .rodata,"a"')
out.append(".p2align 6")
out.append(".amdhsa_kernel " + K)
out.append("  .amdhsa_next_free_vgpr %d" % (136 if opt["stamps"] else 128))
out.append("  .amdhsa_next_free_sgpr 102")
out.append("  .amdhsa_accum_offset %d" % (136 if opt["stamps"] else 128))
out.append("  .amdhsa_group_segment_fixed_size 0")
out.append("  .amdhsa_kernarg_size 96")
out.append("  .amdhsa_user_sgpr_count 2")
out.append("  .amdhsa_user_sgpr_kernarg_segment_ptr 1")
out.append("  .amdhsa_system_sgpr_workgroup_id_x 1")
out.append(".end_amdhsa_kernel")
open(sys.argv[1], "w").write("\n".join(out) + "\n")
print("LDS", LDS_BYTES, "WS", WS_BYTES, "stamps", nstamp[0])
```
